```python
import torch

def _softmax(x, axis=-1):
    return torch.softmax(x, dim=axis)
def _gelu(x):
    return torch.nn.functional.gelu(x, approximate="tanh")
def _silu(x):
    return torch.nn.functional.silu(x)
def _sigmoid(x):
    return torch.sigmoid(x)
def _layernorm(x, axis=-1, eps=1e-5):
    m = x.mean(dim=axis, keepdim=True)
    v = x.var(dim=axis, keepdim=True, unbiased=False)
    return (x - m) / torch.sqrt(v + eps)
def _scatter_add(tgt, idx, src, axis=0):
    return tgt.clone().index_add_(axis, idx, src)
def _segment_sum(src, seg, n):
    out = torch.zeros((n,) + src.shape[1:], dtype=src.dtype)
    return out.index_add_(0, seg, src)
def _pad(x, pw):
    flat = tuple(v for pair in reversed(pw) for v in pair)
    return torch.nn.functional.pad(x, flat)

kernel_name = 'recurrent_scan__linear_kernel_hedgehog__dense_activation_gelu__prompt'

def setup_inputs():

    _w = (lambda a: (lambda t: t.to(torch.bfloat16) if t.is_floating_point() else t)(torch.as_tensor(a)))
    def _A_setup():
        B, S, D, H = 1, 2048, 1024, 32
        Dh = D // H
        return {
            "x": _w((lambda *s: torch.randn(*s, dtype=torch.bfloat16) * 0.05)(B, S, D)),
            "wqkv": _w((lambda *s: torch.randn(*s, dtype=torch.bfloat16) * 0.4)(D, 3 * D)),
            "w_phi": _w((lambda *s: torch.randn(*s, dtype=torch.bfloat16) * 0.4)(H, Dh, Dh) * (Dh ** -0.5)),
            "wo": _w((lambda *s: torch.randn(*s, dtype=torch.bfloat16) * 0.2)(D, D)),
        }
    _A_in = _A_setup()

    def _B_setup():
        B, S, D, F = 1, 2048, 1024, 3584
        return {
            "x": _w((lambda *s: torch.randn(*s, dtype=torch.bfloat16) * 0.05)(B, S, D)),
            "w1": _w((lambda *s: torch.randn(*s, dtype=torch.bfloat16) * 0.4)(D, F) * (D ** -0.5)),
            "b1": _w((lambda *s: torch.randn(*s, dtype=torch.bfloat16) * 12.8)(F) * 0.01),
            "w2": _w((lambda *s: torch.randn(*s, dtype=torch.bfloat16) * 0.1)(F, D) * (F ** -0.5)),
            "b2": _w((lambda *s: torch.randn(*s, dtype=torch.bfloat16) * 0.8)(D) * 0.01),
        }
    _B_in = _B_setup()

    return {
        "A_x": _A_in["x"],
        "A_wqkv": _A_in["wqkv"],
        "A_w_phi": _A_in["w_phi"],
        "A_wo": _A_in["wo"],
        "B_x": _B_in["x"],
        "B_w1": _B_in["w1"],
        "B_b1": _B_in["b1"],
        "B_w2": _B_in["w2"],
        "B_b2": _B_in["b2"],
    }

def reference(A_x, A_wqkv, A_w_phi, A_wo, B_x, B_w1, B_b1, B_w2, B_b2):
    def _A_ref(x, wqkv, w_phi, wo):
        B, S, D = x.shape
        H = 32; Dh = D // H
        qkv = (lambda x, *d: x.permute(*d))((x @ wqkv).reshape(B, S, 3, H, Dh), 2, 0, 3, 1, 4)
        q, k, v = qkv[0], qkv[1], qkv[2]
        pq = torch.einsum("bhsd,hdf->bhsf", q, w_phi)
        pk = torch.einsum("bhsd,hdf->bhsf", k, w_phi)
        phi_q = torch.concatenate([_softmax(pq, axis=-1), _softmax(-pq, axis=-1)], axis=-1)
        phi_k = torch.concatenate([_softmax(pk, axis=-1), _softmax(-pk, axis=-1)], axis=-1)
        kv = torch.einsum("bhsf,bhsd->bhfd", phi_k, v)
        z  = torch.einsum("bhsf->bhf", phi_k)
        num = torch.einsum("bhqf,bhfd->bhqd", phi_q, kv)
        den = torch.einsum("bhqf,bhf->bhq", phi_q, z)[..., None] + 1e-6
        o = num / den
        return (lambda x, *d: x.permute(*d))(o, 0, 2, 1, 3).reshape(B, S, D) @ wo

    def _B_ref(x, w1, b1, w2, b2):
        h = torch.einsum("bsd,df->bsf", x, w1) + b1
        h = _gelu(h)
        return torch.einsum("bsf,fd->bsd", h, w2) + b2

    x = A_x
    xn = _layernorm(x, axis=-1)
    s = _A_ref(xn, A_wqkv, A_w_phi, A_wo)
    g = _silu(_B_ref(xn, B_w1, B_b1, B_w2, B_b2))
    return x + s * g
```

```python
HDR = """; Kernarg layout for this problem (96 bytes, ptrs only, base s[0:1]):
"""

def vr(a, n=1):
    return f"v{a}" if n == 1 else f"v[{a}:{a+n-1}]"
def ar(a, n=1):
    return f"a{a}" if n == 1 else f"a[{a}:{a+n-1}]"
def sr(a, n=1):
    return f"s{a}" if n == 1 else f"s[{a}:{a+n-1}]"

class Kern:
    def __init__(self, name, grid, block, lds=0, nvgpr=256, nagpr=0, nsgpr=102):
        assert name.endswith("_kernel")
        self.name, self.grid, self.block, self.lds = name, grid, block, lds
        self.nvgpr, self.nagpr, self.nsgpr = nvgpr, nagpr, nsgpr
        self.lines = []
        self._lbl = 0
    def __call__(self, s):
        for l in s.split("\n"):
            l = l.strip()
            if l:
                self.lines.append(("" if l.endswith(":") else "    ") + l)
    prof = False
    def stamp(self, i):
        if not Kern.prof: return
        self.nsgpr = 102
        if i == 0: self("s_memrealtime s[96:97]")
        self(f"s_memtime s[{80+2*i}:{81+2*i}]\ns_waitcnt lgkmcnt(0)")
    def prof_end(self, kid, srd, last=7):
        if not Kern.prof: return
        self("s_mov_b64 exec, -1\ns_waitcnt lgkmcnt(0)" if kid == 1 else "s_mov_b64 exec, -1\ns_waitcnt vmcnt(0) lgkmcnt(0)")
        self.stamp(last)
        self("s_memrealtime s[98:99]\ns_waitcnt lgkmcnt(0)")
        self(f"s_lshl_b32 s100, s2, 9\ns_add_u32 s100, s100, {48*(1<<20) + kid*256*512}")
        self("v_lshrrev_b32 v1, 6, v0\nv_lshlrev_b32 v1, 6, v1")
        for i in range(8): self(f"v_mov_b32 v{64+i}, s{80+2*i}")
        self("v_mov_b32 v72, s96\nv_mov_b32 v73, s98\ns_getreg_b32 s101, hwreg(HW_REG_XCC_ID)\nv_mov_b32 v74, s101\ns_getreg_b32 s101, hwreg(HW_REG_HW_ID)\nv_mov_b32 v75, s101")
        self("s_mov_b64 exec, 1")
        for i in range(3): self(f"buffer_store_dwordx4 v[{64+4*i}:{67+4*i}], v1, s[{srd}:{srd+3}], s100 offen offset:{16*i}")
    def label(self, base="L"):
        self._lbl += 1
        return f".{self.name[:-7]}_{base}{self._lbl}"
    def text(self):
        acc = (self.nvgpr + 3) // 4 * 4
        tot = acc + self.nagpr if self.nagpr else self.nvgpr
        t = f".text\n.globl {self.name}\n.p2align 8\n.type {self.name},@function\n{self.name}:\n"
        t += "\n".join(self.lines) + "\n    s_endpgm\n"
        d = f""".section .rodata,"a"
.p2align 6
.amdhsa_kernel {self.name}
  .amdhsa_next_free_vgpr {tot}
  .amdhsa_next_free_sgpr {self.nsgpr}
  .amdhsa_accum_offset {acc}
  .amdhsa_group_segment_fixed_size 0
  .amdhsa_kernarg_size 96
  .amdhsa_user_sgpr_count 2
  .amdhsa_user_sgpr_kernarg_segment_ptr 1
  .amdhsa_system_sgpr_workgroup_id_x 1
.end_amdhsa_kernel
"""
        return t, d

def module(kerns, launches=None):
    out = HDR
    for k in (launches or kerns):
        out += f"; @launch kernel={k.name} grid=({k.grid},1,1) block=({k.block},1,1) lds={k.lds}\n"
    out += '.amdgcn_target "amdgcn-amd-amdhsa--gfx950"\n'
    ds = []
    for k in kerns:
        t, d = k.text()
        out += t
        ds.append(d)
    out += "".join(ds)
    return out
```

```python
HDR = """; Kernarg layout for this problem (96 bytes, ptrs only, base s[0:1]):
"""

def vr(a, n=1):
    return f"v{a}" if n == 1 else f"v[{a}:{a+n-1}]"
def ar(a, n=1):
    return f"a{a}" if n == 1 else f"a[{a}:{a+n-1}]"
def sr(a, n=1):
    return f"s{a}" if n == 1 else f"s[{a}:{a+n-1}]"

class Kern:
    def __init__(self, name, grid, block, lds=0, nvgpr=256, nagpr=0, nsgpr=102):
        assert name.endswith("_kernel")
        self.name, self.grid, self.block, self.lds = name, grid, block, lds
        self.nvgpr, self.nagpr, self.nsgpr = nvgpr, nagpr, nsgpr
        self.lines = []
        self._lbl = 0
    def __call__(self, s):
        for l in s.split("\n"):
            l = l.strip()
            if l:
                self.lines.append(("" if l.endswith(":") else "    ") + l)
    prof = False
    def stamp(self, i):
        if not Kern.prof: return
        self.nsgpr = 102
        if i == 0: self("s_memrealtime s[96:97]")
        self(f"s_memtime s[{80+2*i}:{81+2*i}]\ns_waitcnt lgkmcnt(0)")
    def prof_end(self, kid, srd, last=7):
        if not Kern.prof: return
        self("s_mov_b64 exec, -1\ns_waitcnt vmcnt(0) lgkmcnt(0)")
        self.stamp(last)
        self("s_memrealtime s[98:99]\ns_waitcnt lgkmcnt(0)")
        self(f"s_lshl_b32 s100, s2, 9\ns_add_u32 s100, s100, {48*(1<<20) + kid*256*512}")
        self("v_lshrrev_b32 v1, 6, v0\nv_lshlrev_b32 v1, 6, v1")
        for i in range(8): self(f"v_mov_b32 v{4+i}, s{80+2*i}")
        self("v_mov_b32 v12, s96\nv_mov_b32 v13, s98\ns_getreg_b32 s101, hwreg(HW_REG_XCC_ID)\nv_mov_b32 v14, s101\ns_getreg_b32 s101, hwreg(HW_REG_HW_ID)\nv_mov_b32 v15, s101")
        self("s_mov_b64 exec, 1")
        for i in range(3): self(f"buffer_store_dwordx4 v[{4+4*i}:{7+4*i}], v1, s[{srd}:{srd+3}], s100 offen offset:{16*i}")
    def label(self, base="L"):
        self._lbl += 1
        return f".{self.name[:-7]}_{base}{self._lbl}"
    def text(self):
        acc = (self.nvgpr + 3) // 4 * 4
        tot = acc + self.nagpr if self.nagpr else self.nvgpr
        t = f".text\n.globl {self.name}\n.p2align 8\n.type {self.name},@function\n{self.name}:\n"
        t += "\n".join(self.lines) + "\n    s_endpgm\n"
        d = f""".section .rodata,"a"
.p2align 6
.amdhsa_kernel {self.name}
  .amdhsa_next_free_vgpr {tot}
  .amdhsa_next_free_sgpr {self.nsgpr}
  .amdhsa_accum_offset {acc}
  .amdhsa_group_segment_fixed_size 0
  .amdhsa_kernarg_size 96
  .amdhsa_user_sgpr_count 2
  .amdhsa_user_sgpr_kernarg_segment_ptr 1
  .amdhsa_system_sgpr_workgroup_id_x 1
.end_amdhsa_kernel
"""
        return t, d

def module(kerns, launches=None):
    out = HDR
    for k in (launches or kerns):
        out += f"; @launch kernel={k.name} grid=({k.grid},1,1) block=({k.block},1,1) lds={k.lds}\n"
    out += '.amdgcn_target "amdgcn-amd-amdhsa--gfx950"\n'
    ds = []
    for k in kerns:
        t, d = k.text()
        out += t
        ds.append(d)
    out += "".join(ds)
    return out
```

```python
import sys, struct
sys.path.insert(0, "dev")
from asmlib import *
import haz
MB = 1 << 20
XN, A3, KVP, ZP, FLAGS, F1, GG = 1*MB, 5*MB, 24*MB, 26*MB, 27*MB, 32*MB, 40*MB
A3S = 288 * 1024
FL_K2, FL_F1, FL_G = 0, 4096, 20480
WSZ = 0x10000000
def f2u(x): return "0x%08x" % struct.unpack("<I", struct.pack("<f", x))[0]
LOG2E = 1.4426950408889634
POLL = 1 << 14
PF3 = True

def srd(k, d, lo, hi, nrec, off=None):
    if off is None:
        k(f"s_mov_b32 s{d}, s{lo}\ns_mov_b32 s{d+1}, s{hi}")
    else:
        k(f"s_add_u32 s{d}, s{lo}, {off}\ns_addc_u32 s{d+1}, s{hi}, 0")
    k(f"s_mov_b32 s{d+2}, {nrec}\ns_mov_b32 s{d+3}, 0x20000")

def xsum_half(k, a, t, op="v_add_f32"):
    k(f"v_mov_b32 v{t}, v{a}\nv_permlane32_swap_b32 v{a}, v{t}\n{op} v{a}, v{a}, v{t}")

def rnd_bf16(k, a):
    k(f"v_cvt_pk_bf16_f32 v{a}, v{a}, v{a}\nv_lshlrev_b32 v{a}, 16, v{a}")

def k1():
    k = Kern("ln_kernel", 256, 512, lds=512, nvgpr=64, nsgpr=32)
    k("s_load_dwordx2 s[4:5], s[0:1], 0\ns_load_dwordx2 s[6:7], s[0:1], 88")
    k("s_cmp_ge_u32 s2, 256\ns_cbranch_scc1 .ln_end")
    for i in range(8): k.stamp(i)
    k("""v_and_b32 v1, 7, v0
    v_lshrrev_b32 v2, 6, v0
    v_bfe_u32 v3, v0, 3, 3
    v_lshl_add_u32 v3, v2, 4, v3
    s_lshl_b32 s3, s2, 14
    v_lshlrev_b32 v4, 11, v1
    v_lshl_add_u32 v4, v3, 4, v4
    v_add_u32 v4, s3, v4""")
    k("s_waitcnt lgkmcnt(0)")
    srd(k, 8, 4, 5, 4*MB)
    srd(k, 12, 6, 7, WSZ)
    k("buffer_load_dwordx4 v[8:11], v4, s[8:11], 0 offen\nbuffer_load_dwordx4 v[12:15], v4, s[8:11], 0 offen offset:128")
    k(f"""s_lshr_b32 s16, s2, 2
    s_lshl_b32 s16, s16, 16
    s_and_b32 s17, s2, 3
    s_lshl_b32 s17, s17, 7
    s_add_u32 s16, s16, s17
    s_add_u32 s16, s16, {XN}
    v_lshrrev_b32 v5, 1, v3
    v_lshlrev_b32 v5, 10, v5
    v_and_b32 v6, 1, v3
    v_lshl_add_u32 v5, v6, 9, v5
    v_lshl_add_u32 v5, v1, 4, v5
    v_add_u32 v5, s16, v5
    s_mov_b32 s18, 4096
    v_lshlrev_b32 v6, 6, v1
    v_lshl_add_u32 v7, v2, 3, v6""")
    k(f"""v_cmp_gt_u32 vcc, 64, v0
    s_lshl_b32 s19, s2, 8
    s_add_u32 s19, s19, {FLAGS}
    v_lshlrev_b32 v40, 2, v0
    v_mov_b32 v41, 0
    s_and_saveexec_b64 s[20:21], vcc
    s_cbranch_execz .ln_nz
    buffer_store_dword v41, v40, s[12:15], s19 offen sc1
    .ln_nz:
    s_mov_b64 exec, s[20:21]""")
    k("s_mov_b32 s22, 0xffff0000")
    k("s_waitcnt vmcnt(0)")
    for i in range(8):
        k(f"v_lshlrev_b32 v{16+2*i}, 16, v{8+i}\nv_and_b32 v{17+2*i}, s22, v{8+i}")
    def red3(a, t):
        k(f"v_add_f32_dpp v{a}, v{a}, v{a} row_ror:8 row_mask:0xf bank_mask:0xf")
        k(f"v_mov_b32 v{t}, v{a}\nv_permlane16_swap_b32 v{a}, v{t}\nv_add_f32 v{a}, v{a}, v{t}")
        xsum_half(k, a, t)
    for i in range(4):
        k(f"v_add_f32 v{32+i}, v{16+4*i}, v{17+4*i}\nv_add_f32 v{36+i}, v{18+4*i}, v{19+4*i}")
    for i in range(4): k(f"v_add_f32 v{32+i}, v{32+i}, v{36+i}")
    k("v_add_f32 v32, v32, v33\nv_add_f32 v34, v34, v35\nv_add_f32 v32, v32, v34")
    red3(32, 33)
    k(f"v_mul_f32 v32, {f2u(1/128)}, v32")
    for i in range(16): k(f"v_sub_f32 v{40+i}, v{16+i}, v32")
    for i in range(4): k(f"v_mul_f32 v{36+i}, v{40+i}, v{40+i}")
    for i in range(4, 16): k(f"v_fmac_f32 v{36+(i&3)}, v{40+i}, v{40+i}")
    k("v_add_f32 v36, v36, v37\nv_add_f32 v38, v38, v39\nv_add_f32 v33, v36, v38")
    red3(33, 34)
    k("ds_write_b64 v7, v[32:33]\ns_waitcnt lgkmcnt(0)\ns_barrier")
    for i in range(4): k(f"ds_read_b128 v[{40+4*i}:{43+4*i}], v6 offset:{16*i}")
    k("s_waitcnt lgkmcnt(0)")
    k("""v_add_f32 v32, v40, v42
    v_add_f32 v33, v44, v46
    v_add_f32 v34, v48, v50
    v_add_f32 v35, v52, v54
    v_add_f32 v36, v41, v43
    v_add_f32 v37, v45, v47
    v_add_f32 v38, v49, v51
    v_add_f32 v39, v53, v55
    v_add_f32 v32, v32, v33
    v_add_f32 v34, v34, v35
    v_add_f32 v36, v36, v37
    v_add_f32 v38, v38, v39
    v_add_f32 v32, v32, v34
    v_add_f32 v36, v36, v38
    v_mul_f32 v32, 0x3e000000, v32""")
    for i in range(8): k(f"v_sub_f32 v{40+2*i}, v{40+2*i}, v32")
    k("v_mul_f32 v33, v40, v40\nv_mul_f32 v34, v42, v42")
    for i in range(2, 8): k(f"v_fmac_f32 v{33+(i&1)}, v{40+2*i}, v{40+2*i}")
    k(f"""v_add_f32 v33, v33, v34
    v_fmac_f32 v36, {f2u(128.0)}, v33
    v_mul_f32 v36, {f2u(1/1024)}, v36""")
    rnd_bf16(k, 32); rnd_bf16(k, 36)
    k(f"v_add_f32 v36, {f2u(1e-5)}, v36"); rnd_bf16(k, 36)
    k("v_sqrt_f32 v36, v36"); rnd_bf16(k, 36)
    k("v_rcp_f32 v36, v36")
    for i in range(16): k(f"v_sub_f32 v{16+i}, v{16+i}, v32")
    for i in range(8): k(f"v_cvt_pk_bf16_f32 v{8+i}, v{16+2*i}, v{17+2*i}")
    for i in range(8): k(f"v_lshlrev_b32 v{16+2*i}, 16, v{8+i}\nv_and_b32 v{17+2*i}, s22, v{8+i}")
    for i in range(16): k(f"v_mul_f32 v{16+i}, v{16+i}, v36")
    for i in range(8): k(f"v_cvt_pk_bf16_f32 v{8+i}, v{16+2*i}, v{17+2*i}")
    k("buffer_store_dwordx4 v[8:11], v5, s[12:15], 0 offen\nbuffer_store_dwordx4 v[12:15], v5, s[12:15], s18 offen")
    k.prof_end(0, 12)
    k(".ln_end:")
    return k

def interleave(mf, others, first=0):
    out = []; n = len(mf); m = len(others); o = 0
    for i, x in enumerate(mf):
        out.append(x)
        if i >= first:
            tgt = min(m, -(-m * (i - first + 1) // max(1, (n - first - 1)))) if n - first - 1 > 0 else m
            while o < tgt: out.append(others[o]); o += 1
    out += others[o:]
    return "\n".join(out)

MF = "v_mfma_f32_32x32x16_bf16"
SLOT2, CH2, NS2 = 30720, 3840, 5
L_WPHI = 153600
L_T, L_R, L_ZL, L_KF, L_ZB = 0, 69632, 135168, 137216, 145408
def k2():
    k = Kern("g1_kernel", 256, 512, lds=157696, nvgpr=256, nsgpr=72)
    k("s_load_dwordx4 s[4:7], s[0:1], 8\ns_load_dwordx4 s[8:11], s[0:1], 40\ns_load_dwordx2 s[12:13], s[0:1], 88\ns_load_dwordx2 s[62:63], s[0:1], 24\ns_load_dwordx2 s[64:65], s[0:1], 56")
    k("s_cmp_ge_u32 s2, 256\ns_cbranch_scc1 .g1_end")
    for i in range(8): k.stamp(i)
    k("""v_lshrrev_b32 v2, 6, v0
    v_and_b32 v1, 63, v0
    s_and_b32 s44, s2, 7
    s_lshr_b32 s45, s2, 3
    v_readfirstlane_b32 s14, v2
    s_lshr_b32 s19, s45, 4
    s_and_b32 s17, s45, 7
    s_bfe_u32 s18, s45, 0x10003
    s_lshl_b32 s44, s44, 1
    s_add_u32 s18, s18, s44
    s_and_b32 s15, s14, 3
    s_lshr_b32 s16, s14, 2""")
    k("""v_lshrrev_b32 v7, 5, v1
    v_bfe_u32 v8, v1, 2, 2
    v_bfe_u32 v9, v1, 4, 1
    v_lshlrev_b32 v9, 5, v9
    v_and_b32 v10, 3, v1
    v_lshl_add_u32 v9, v10, 3, v9
    v_cmp_le_u32 vcc, 28, v1
    v_lshlrev_b32 v2, 4, v1
    s_mul_i32 s39, s14, 3840
    s_mul_i32 s44, s15, 7680
    v_cndmask_b32 v10, 0, 1, vcc
    v_mul_u32_u24 v11, 28, v10
    v_sub_u32 v11, v1, v11
    v_add_u32 v5, s44, v2""")
    k(f"""v_mul_u32_u24 v6, 7680, v7
    v_mul_u32_u24 v12, 448, v8
    v_add3_u32 v6, v6, v12, v9
    s_lshl_b32 s44, s14, 2
    v_add_u32 v10, s44, v10""")
    k("s_waitcnt lgkmcnt(0)")
    k(f"""s_lshl_b32 s44, s17, 3
    s_add_u32 s44, s44, s14
    s_lshl_b32 s44, s44, 16
    s_add_u32 s44, s44, {XN - 1792}""")
    srd(k, 24, 12, 13, 65536 + 1792, "s44")
    srd(k, 28, 12, 13, WSZ)
    k("s_mov_b32 s36, 0\ns_mov_b32 s37, 0\ns_mov_b32 s40, 32\ns_mov_b32 s46, 0\ns_mov_b32 s47, 0xffff0000")
    k(f"""s_lshl_b32 s44, s17, 3
    s_lshl_b32 s45, s15, 1
    s_add_u32 s44, s44, s45
    s_mul_i32 s48, s44, {A3S}
    s_add_u32 s48, s48, {A3}""")
    k("s_cmp_eq_u32 s19, 0\ns_cbranch_scc1 .g1_qkv")

    def dma(k):
        return ["s_mov_b32 m0, s39\ns_mov_b64 exec, s[42:43]\nbuffer_load_dwordx4 v3, s[20:23], s37 offen lds\nbuffer_load_dwordx4 v4, s[20:23], s37 offen offset:896 lds\ns_mov_b64 exec, -1",
                "buffer_load_dwordx4 v2, s[24:27], s36 offen offset:1792 lds\nbuffer_load_dwordx4 v2, s[24:27], s36 offen offset:2816 lds\ns_add_u32 s36, s36, 2048\ns_add_u32 s37, s37, s38"]
    def adv_w():
        return f"s_add_u32 s39, s39, {SLOT2}\ns_add_u32 s46, s46, 1\ns_cmp_eq_u32 s46, {NS2}\ns_cselect_b32 s41, {-(NS2-1)*SLOT2}, s49\ns_cselect_b32 s46, 0, s46\ns_cselect_b32 s44, {NS2*SLOT2}, 0\ns_sub_u32 s39, s39, s44"
    def reads(st, sub, woffs):
        X = 16 + 24*st; W = 24 + 24*st
        r = []
        r.append(f"ds_read_b128 v[{X}:{X+3}], v5 offset:{1792+sub*1024}")
        for nb, wo in enumerate(woffs):
            for q in range(2):
                r.append(f"ds_read_b64_tr_b16 v[{W+4*nb+2*q}:{W+4*nb+2*q+1}], v6 offset:{(4*sub+q)*CH2+wo}")
            if nb == 0: r.append(f"ds_read_b128 v[{X+4}:{X+7}], v5 offset:{CH2+1792+sub*1024}")
        return r
    def mfmas(st, nnb, swap=()):
        X = 16 + 24*st; W = 24 + 24*st
        r = []
        for nb in range(nnb):
            for mb in range(2):
                a = 64 + (nb*2+mb)*16
                wf, xf = vr(W+4*nb, 4), vr(X+4*mb, 4)
                if nb in swap: wf, xf = xf, wf
                r.append(f"{MF} {vr(a,16)}, {wf}, {xf}, {vr(a,16)}")
        return r
    def prologue_dmas():
        k(f"s_mov_b32 s49, {SLOT2}")
        for s in range(NS2):
            for g in dma(k): k(g)
            k(f"s_add_u32 s39, s39, {SLOT2}")
        k(f"s_sub_u32 s39, s39, {NS2*SLOT2}")
    def mainloop(tag, woffs, swap=()):
        nnb = len(woffs)
        k(f".g1_loop{tag}:")
        k("s_waitcnt lgkmcnt(0)")
        k(interleave(mfmas(0, nnb, swap), reads(1, 1, woffs)))
        k("s_waitcnt vmcnt(12) lgkmcnt(0)\ns_barrier")
        d = dma(k)
        oth = [d[0], d[1] + "\n" + adv_w() + "\nv_add_u32 v5, s41, v5\nv_add_u32 v6, s41, v6"] + reads(0, 0, woffs)
        mf = mfmas(1, nnb, swap)
        body = [mf[0], oth[0], mf[1], oth[1]]
        k("\n".join(body))
        k(interleave(mf[2:], oth[2:]))
        k(f"s_sub_u32 s40, s40, 1\ns_cmp_lg_u32 s40, 0\ns_cbranch_scc1 .g1_loop{tag}")

    srd(k, 20, 8, 9, 1024*7168)
    srd(k, 32, 10, 11, 3584*2)
    k(f"""s_mov_b32 s38, {32*7168}
    s_mov_b32 s42, -1
    s_mov_b32 s43, 0x00ffffff
    s_mul_i32 s44, s18, 448
    v_mul_u32_u24 v3, 7168, v10
    v_lshl_add_u32 v3, v11, 4, v3
    v_add_u32 v3, s44, v3
    v_add_u32 v4, {2*7168-896}, v3
    s_lshl_b32 s45, s16, 8
    s_add_u32 s44, s44, s45
    v_add_u32 v6, s45, v6
    v_lshlrev_b32 v12, 3, v7
    v_add_u32 v12, s44, v12""")
    for nb in range(4):
        for j in range(4):
            t = 192 + (nb*4+j)*2
            k(f"buffer_load_dwordx2 v[{t}:{t+1}], v12, s[32:35], 0 offen offset:{(32*nb+8*j)*2}")
    prologue_dmas()
    k("s_waitcnt vmcnt(20)")
    for nb in range(4):
        for j in range(4):
            t = 192 + (nb*4+j)*2
            for mb in range(2):
                a = 64 + (nb*2+mb)*16 + 4*j
                k(f"v_lshlrev_b32 v{a}, 16, v{t}\nv_and_b32 v{a+1}, s47, v{t}\nv_lshlrev_b32 v{a+2}, 16, v{t+1}\nv_and_b32 v{a+3}, s47, v{t+1}")
    k(f"""s_mul_i32 s44, s18, 14
    s_lshl_b32 s45, s16, 3
    s_add_u32 s44, s44, s45
    s_add_u32 s44, s44, 64
    s_lshl_b32 s44, s44, 10
    s_add_u32 s48, s48, s44
    s_add_u32 s50, s48, {A3S}
    s_mov_b32 s51, {f2u(-2.3022081)}
    s_mov_b32 s52, {f2u(-0.10294324)}""")
    k("s_waitcnt vmcnt(16)\ns_barrier")
    k.stamp(1)
    k("s_cmp_eq_u32 s16, 0\ns_cbranch_scc0 .g1_f3")
    def gelu_tile(nb, mb):
        a = 64 + (nb*2+mb)*16
        T = 192 + 16*((nb*2+mb) & 1)
        P = 224 + 8*((nb*2+mb) & 1)
        for i in range(16): k(f"v_mul_f32 v{T+i}, v{a+i}, v{a+i}")
        for i in range(16): k(f"v_fma_f32 v{T+i}, v{T+i}, s52, v13")
        for i in range(16): k(f"v_mul_f32 v{T+i}, v{T+i}, v{a+i}")
        for i in range(16): k(f"v_exp_f32 v{T+i}, v{T+i}")
        for i in range(16): k(f"v_add_f32 v{T+i}, 1.0, v{T+i}")
        for i in range(16): k(f"v_rcp_f32 v{T+i}, v{T+i}")
        for i in range(16): k(f"v_mul_f32 v{T+i}, v{T+i}, v{a+i}")
        for i in range(8): k(f"v_cvt_pk_bf16_f32 v{P+i}, v{T+2*i}, v{T+2*i+1}")
        for ks in range(2):
            off = (2*nb+ks)*1024
            va = "v2" if off < 4096 else "v14"
            k(f"buffer_store_dwordx4 v[{P+4*ks}:{P+4*ks+3}], {va}, s[28:31], s{48+2*mb} offen offset:{off & 4095}")
    for tag, nnb in (("f4", 4), ("f3", 3)):
        if tag == "f3": k(".g1_f3:")
        woffs = [64*nb for nb in range(nnb)]
        for r in reads(0, 0, woffs): k(r)
        mainloop(tag, woffs)
        k.stamp(2)
        if PF3:
            srd(k, 20, 64, 65, 3584*2048)
            srd(k, 24, 62, 63, 2*MB)
            k("""s_sub_u32 s44, s2, 128
            s_lshl_b32 s44, s44, 3
            s_add_u32 s44, s44, s14
            s_mul_i32 s45, s44, 7168
            s_lshl_b32 s44, s44, 11
            v_lshlrev_b32 v13, 7, v1
            s_mov_b64 exec, s[42:43]
            buffer_load_dword v240, v13, s[20:23], s45 offen
            s_mov_b64 exec, 0xffff
            buffer_load_dword v241, v13, s[24:27], s44 offen
            s_mov_b64 exec, -1""")
        k("v_mov_b32 v13, s51\nv_add_u32 v14, 4096, v2")
        for nb in range(nnb):
            for mb in range(2): gelu_tile(nb, mb)
        k.stamp(3)
        k.prof_end(1, 28)
        k("s_endpgm")

    k(".g1_qkv:")
    srd(k, 20, 4, 5, 1024*6144)
    srd(k, 32, 6, 7, 65536)
    k(f"""s_mov_b32 s38, {32*6144}
    s_mov_b32 s42, 0xf0ffffff
    s_mov_b32 s43, 0x000fffff
    s_lshl_b32 s44, s18, 7
    v_mul_u32_u24 v3, 6144, v10
    v_lshrrev_b32 v12, 3, v11
    v_lshl_add_u32 v3, v12, 11, v3
    v_and_b32 v12, 7, v11
    v_lshl_add_u32 v3, v12, 4, v3
    v_add_u32 v3, s44, v3
    v_add_u32 v4, {2*6144-896}, v3
    s_lshl_b32 s45, s16, 6
    v_add_u32 v6, s45, v6
    s_lshl_b32 s53, s18, 1
    s_add_u32 s53, s53, s16""")
    k(f"""s_cmp_lt_u32 s15, 2
    s_cbranch_scc0 .g1_nophi
    s_lshl_b32 s44, s53, 11
    s_lshl_b32 s45, s15, 10
    s_add_u32 s44, s44, s45
    s_lshl_b32 s54, s16, 11
    s_add_u32 s45, s45, s54
    s_add_u32 m0, s45, {L_WPHI}
    s_nop 0
    buffer_load_dwordx4 v2, s[32:35], s44 offen lds
    .g1_nophi:""")
    prologue_dmas()
    for a in range(64, 160): k(f"v_mov_b32 v{a}, 0")
    k(f"""v_lshl_add_u32 v12, v7, 2, v8
    v_lshl_add_u32 v13, v12, 6, v9
    s_lshl_b32 s44, s16, 11
    s_add_u32 s44, s44, {L_WPHI}
    v_add_u32 v13, s44, v13""")
    k("s_waitcnt vmcnt(16)\ns_barrier")
    k.stamp(1)
    for ks in range(2):
        for q in range(2):
            k(f"ds_read_b64_tr_b16 v[{160+4*ks+2*q}:{161+4*ks+2*q}], v13 offset:{(16*ks+8*q)*64}")
    woffs = [0, 128, 256]
    for r in reads(0, 0, woffs): k(r)
    mainloop("q", woffs, swap=(2,))
    k.stamp(2)
    def pack(dst, src):
        for i in range(8): k(f"v_cvt_pk_bf16_f32 v{dst+i}, v{src+2*i}, v{src+2*i+1}")
    k(f"""s_mul_i32 s44, s14, 8704
    v_and_b32 v14, 31, v1
    v_mul_u32_u24 v14, 136, v14
    v_lshl_add_u32 v14, v7, 3, v14
    v_add_u32 v14, s44, v14
    v_mul_u32_u24 v15, 136, v12
    v_add3_u32 v15, v15, v9, s44
    s_mov_b32 s55, {f2u(LOG2E)}""")
    k("s_waitcnt vmcnt(0) lgkmcnt(0)")
    for mb in range(2): pack(16 + 8*mb, 96 + 16*mb)
    for mb in range(2): pack(48 + 8*mb, 64 + 16*mb)
    for mb in range(2):
        for ks in range(2):
            k(f"{MF} {vr(64+16*mb,16)}, {vr(160+4*ks,4)}, {vr(16+8*mb+4*ks,4)}, {'0' if ks == 0 else vr(64+16*mb,16)}")
    for mb in range(2):
        for ks in range(2):
            k(f"{MF} {vr(96+16*mb,16)}, {vr(160+4*ks,4)}, {vr(48+8*mb+4*ks,4)}, {'0' if ks == 0 else vr(96+16*mb,16)}")
    for mb in range(2): pack(32 + 8*mb, 128 + 16*mb)
    k("s_barrier")
    def softmax(P, D):
        E, N = 128, 144
        for i in range(8): k(f"v_cvt_pk_bf16_f32 v{E+i}, v{P+2*i}, v{P+2*i+1}")
        for i in range(8): k(f"v_lshlrev_b32 v{P+2*i}, 16, v{E+i}\nv_and_b32 v{P+2*i+1}, s47, v{E+i}")
        k(f"v_max3_f32 v168, v{P}, v{P+1}, v{P+2}\nv_min3_f32 v169, v{P}, v{P+1}, v{P+2}")
        k(f"v_max3_f32 v170, v{P+3}, v{P+4}, v{P+5}\nv_min3_f32 v171, v{P+3}, v{P+4}, v{P+5}")
        for i in range(6, 14, 4):
            k(f"v_max3_f32 v168, v168, v{P+i}, v{P+i+1}\nv_min3_f32 v169, v169, v{P+i}, v{P+i+1}")
            k(f"v_max3_f32 v170, v170, v{P+i+2}, v{P+i+3}\nv_min3_f32 v171, v171, v{P+i+2}, v{P+i+3}")
        k(f"v_max3_f32 v168, v168, v{P+14}, v{P+15}\nv_min3_f32 v169, v169, v{P+14}, v{P+15}")
        k("v_max_f32 v168, v168, v170\nv_min_f32 v169, v169, v171")
        k("v_mov_b32 v170, v168\nv_mov_b32 v171, v169\ns_nop 0\nv_permlane32_swap_b32 v168, v170\nv_permlane32_swap_b32 v169, v171")
        k("v_max_f32 v168, v168, v170\nv_min_f32 v169, v169, v171")
        k("v_mul_f32 v168, s55, v168\nv_mul_f32 v169, s55, v169")
        for i in range(16):
            k(f"v_fma_f32 v{E+i}, v{P+i}, s55, -v168\nv_fma_f32 v{N+i}, -v{P+i}, s55, v169")
        for i in range(16): k(f"v_exp_f32 v{E+i}, v{E+i}\nv_exp_f32 v{N+i}, v{N+i}")
        k(f"v_add_f32 v168, v{E}, v{E+1}\nv_add_f32 v169, v{N}, v{N+1}\nv_add_f32 v170, v{E+2}, v{E+3}\nv_add_f32 v171, v{N+2}, v{N+3}")
        for i in range(4, 16, 2):
            k(f"v_add_f32 v168, v168, v{E+i}\nv_add_f32 v169, v169, v{N+i}\nv_add_f32 v170, v170, v{E+i+1}\nv_add_f32 v171, v171, v{N+i+1}")
        k("v_add_f32 v168, v168, v170\nv_add_f32 v169, v169, v171")
        k("v_mov_b32 v170, v168\nv_mov_b32 v171, v169\ns_nop 0\nv_permlane32_swap_b32 v168, v170\nv_permlane32_swap_b32 v169, v171")
        k("v_add_f32 v168, v168, v170\nv_add_f32 v169, v169, v171\nv_rcp_f32 v168, v168\nv_rcp_f32 v169, v169")
        for i in range(16): k(f"v_mul_f32 v{E+i}, v{E+i}, v168\nv_mul_f32 v{N+i}, v{N+i}, v169")
        for i in range(8): k(f"v_cvt_pk_bf16_f32 v{D+i}, v{E+2*i}, v{E+2*i+1}")
        for i in range(8): k(f"v_cvt_pk_bf16_f32 v{D+8+i}, v{N+2*i}, v{N+2*i+1}")
    for mb in range(2):
        D = 208 + 0
        D = 176 + 16*mb
        softmax(64 + 16*mb, D)
        for s in range(2):
            for j in range(4):
                k(f"ds_write_b64 v14, v[{D+8*s+2*j}:{D+8*s+2*j+1}] offset:{32*mb*136 + (32*s+8*j)*2}")
    k("s_waitcnt lgkmcnt(0)")
    n = 0
    for fb in range(2):
        for mb in range(2):
            for ks in range(2):
                f = 128 + ((fb*2+mb)*2+ks)*4
                for q in range(2):
                    k(f"ds_read_b64_tr_b16 v[{f+2*q}:{f+2*q+1}], v15 offset:{(32*mb+16*ks+8*q)*136 + fb*64}")
        if fb == 0: k("v_mov_b32 v168, 0\nv_mov_b32 v169, 0\ns_mov_b32 s56, 0x3f803f80")
    for fb in range(2):
        k(f"s_waitcnt lgkmcnt({8 if fb == 0 else 0})")
        i = 0
        for mb in range(2):
            for ks in range(2):
                f = 128 + ((fb*2+mb)*2+ks)*4
                k(f"{MF} {vr(224+16*fb,16)}, {vr(f,4)}, {vr(32+8*mb+4*ks,4)}, {'0' if i == 0 else vr(224+16*fb,16)}")
                for t in range(4): k(f"v_dot2c_f32_bf16 v{168+fb}, s56, v{f+t}")
                i += 1
    k("v_permlane32_swap_b32 v168, v169\nv_add_f32 v168, v168, v169")
    k(f"""s_lshl_b32 s44, s14, 13
    v_add_u32 v14, s44, v2
    v_add_u32 v14, {L_R}, v14
    s_lshl_b32 s44, s14, 8
    v_lshlrev_b32 v13, 2, v1
    v_add_u32 v15, s44, v13
    v_add_u32 v15, {L_ZL}, v15
    ds_write_b32 v15, v168""")
    for qd in range(8): k(f"ds_write_b128 v14, v[{224+4*qd}:{227+4*qd}] offset:{qd*1024}")
    k(f"""s_lshl_b32 s44, s16, 15
    s_lshl_b32 s45, s15, 11
    s_add_u32 s44, s44, s45
    v_add_u32 v14, s44, v2
    v_add_u32 v14, {L_R}, v14
    s_lshl_b32 s44, s16, 10
    v_add_u32 v15, s44, v13
    v_add_u32 v15, {L_ZL}, v15
    s_lshl_b32 s57, s53, 16
    s_add_u32 s57, s57, s45
    s_add_u32 s57, s57, {KVP}
    s_lshl_b32 s44, s17, 13
    s_add_u32 s58, s57, s44
    s_lshl_b32 s59, s53, 11
    s_add_u32 s59, s59, {ZP}
    s_lshl_b32 s44, s17, 8
    s_add_u32 s60, s59, s44""")
    k("s_waitcnt lgkmcnt(0)\ns_barrier")
    for ww in range(4):
        for qq in range(2): k(f"ds_read_b128 v[{128+8*ww+4*qq}:{131+8*ww+4*qq}], v14 offset:{ww*8192+qq*1024}")
    for ww in range(4): k(f"ds_read_b32 v{168+ww}, v15 offset:{ww*256}")
    k("s_waitcnt lgkmcnt(4)")
    for i in range(8): k(f"v_add_f32 v{128+i}, v{128+i}, v{136+i}\nv_add_f32 v{144+i}, v{144+i}, v{152+i}")
    for i in range(8): k(f"v_add_f32 v{208+i}, v{128+i}, v{144+i}")
    k("buffer_store_dwordx4 v[208:211], v2, s[28:31], s58 offen sc1\nbuffer_store_dwordx4 v[212:215], v2, s[28:31], s58 offen offset:1024 sc1")
    k("""s_waitcnt lgkmcnt(0)
    v_add_f32 v168, v168, v169
    v_add_f32 v170, v170, v171
    v_add_f32 v216, v168, v170
    s_cmp_eq_u32 s15, 0
    s_cbranch_scc0 .g1_noz
    buffer_store_dword v216, v13, s[28:31], s60 offen sc1
    .g1_noz:""")
    k.stamp(3)
    softmax(96, 176)
    k("s_waitcnt vmcnt(0)\ns_barrier")
    k.stamp(4)
    k(f"""s_lshl_b32 s61, s18, 7
    s_add_u32 s61, s61, {FLAGS + FL_K2}
    s_cmp_eq_u32 s14, 0
    s_cbranch_scc0 .g1_nofl
    s_lshl_b32 s44, s17, 2
    v_mov_b32 v14, s44
    v_mov_b32 v15, 1
    s_mov_b64 exec, 1
    buffer_store_dword v15, v14, s[28:31], s61 offen sc1
    s_mov_b64 exec, -1
    .g1_nofl:""")
    softmax(112, 192)
    k.stamp(5)
    k(f"""s_cmp_eq_u32 s14, 0
    s_cbranch_scc0 .g1_polled
    s_mov_b32 s44, {POLL}
    s_mov_b64 exec, 0xff
    .g1_poll:
    buffer_load_dword v15, v13, s[28:31], s61 offen sc1
    s_waitcnt vmcnt(0)
    v_cmp_ne_u32 vcc, 1, v15
    s_sub_u32 s44, s44, 1
    s_cbranch_vccz .g1_pdone
    s_sleep 1
    s_cmp_lg_u32 s44, 0
    s_cbranch_scc1 .g1_poll
    .g1_pdone:
    s_mov_b64 exec, -1
    .g1_polled:
    s_barrier""")
    k.stamp(6)
    for mm in range(8):
        k(f"buffer_load_dwordx4 v[{64+8*mm}:{67+8*mm}], v2, s[28:31], s57 offen sc1\nbuffer_load_dwordx4 v[{68+8*mm}:{71+8*mm}], v2, s[28:31], s57 offen offset:1024 sc1")
        if mm < 7: k("s_add_u32 s57, s57, 8192")
    k("s_cmp_eq_u32 s15, 0\ns_cbranch_scc0 .g1_noz2")
    for mm in range(8): k(f"buffer_load_dword v{128+mm}, v13, s[28:31], s59 offen offset:{256*mm} sc1")
    k(f"""s_lshl_b32 s44, s16, 7
    v_lshlrev_b32 v14, 1, v1
    v_add_u32 v14, s44, v14
    v_add_u32 v14, {L_ZB}, v14
    s_waitcnt vmcnt(0)
    v_add_f32 v128, v128, v129
    v_add_f32 v130, v130, v131
    v_add_f32 v132, v132, v133
    v_add_f32 v134, v134, v135
    v_add_f32 v128, v128, v130
    v_add_f32 v132, v132, v134
    v_add_f32 v128, v128, v132
    v_cvt_pk_bf16_f32 v128, v128, v128
    ds_write_b16 v14, v128
    .g1_noz2:""")
    k(f"""s_lshl_b32 s44, s16, 12
    v_add_u32 v14, s44, v2
    v_add_u32 v14, {L_KF}, v14
    s_lshl_b32 s45, s15, 10
    v_add_u32 v15, s45, v14
    s_lshl_b32 s44, s16, 7
    v_lshlrev_b32 v12, 3, v7
    v_add_u32 v12, s44, v12
    v_add_u32 v12, {L_ZB}, v12
    s_waitcnt vmcnt(0)""")
    for st in (32, 16, 8):
        for i in range(st): k(f"v_add_f32 v{64+i}, v{64+i}, v{64+st+i}")
    for i in range(4): k(f"v_cvt_pk_bf16_f32 v{64+i}, v{64+2*i}, v{65+2*i}")
    k("ds_write_b128 v15, v[64:67]\ns_waitcnt lgkmcnt(0)\ns_barrier")
    for f in range(4): k(f"ds_read_b128 v[{64+4*f}:{67+4*f}], v14 offset:{1024*f}")
    for f in range(4):
        for q in range(2): k(f"ds_read_b64 v[{80+4*f+2*q}:{81+4*f+2*q}], v12 offset:{(16*f+8*q)*2}")
    k(f"""s_lshl_b32 s44, s53, 11
    s_add_u32 s48, s48, s44
    s_add_u32 s50, s48, {A3S}
    s_waitcnt lgkmcnt(0)""")
    for mb in range(2):
        for f in range(4):
            k(f"{MF} {vr(128+16*mb,16)}, {vr(80+4*f,4)}, {vr(176+16*mb+4*f,4)}, {'0' if f == 0 else vr(128+16*mb,16)}")
        for f in range(4):
            k(f"{MF} {vr(96+16*mb,16)}, {vr(64+4*f,4)}, {vr(176+16*mb+4*f,4)}, {'0' if f == 0 else vr(96+16*mb,16)}")
    for mb in range(2):
        d = 128 + 16*mb; o = 96 + 16*mb; P = 16 + 8*mb
        rnd_bf16(k, d); k(f"v_add_f32 v{d}, {f2u(1e-6)}, v{d}"); rnd_bf16(k, d); k(f"v_rcp_f32 v{d}, v{d}")
        pack(P, o)
        for i in range(8): k(f"v_lshlrev_b32 v{o+2*i}, 16, v{P+i}\nv_and_b32 v{o+2*i+1}, s47, v{P+i}")
        for i in range(16): k(f"v_mul_f32 v{o+i}, v{o+i}, v{d}")
        pack(P, o)
        for ks in range(2):
            k(f"buffer_store_dwordx4 v[{P+4*ks}:{P+4*ks+3}], v2, s[28:31], s{48+2*mb} offen offset:{1024*ks}")
    k.prof_end(1, 28)
    k(".g1_end:")
    return k

def build(path, which=None, verbose=False):
    from gen3 import k3
    which = which or (k1, k2, k3)
    ks = []
    for f in which:
        k = f()
        k.lines, n = haz.fix(k.name, k.lines, verbose)
        assert haz.check(k.name, k.lines + ["s_endpgm"]) == 0
        print(k.name, "lines", len(k.lines), "nop states", n)
        ks.append(k)
    open(path, "w").write(module(ks))
if __name__ == "__main__":
    if "-p" in sys.argv:
        Kern.prof = True
        build("prof.s"); sys.exit(0)
    build("recurrent_scan__linear_kernel_hedgehog__dense_activation_gelu__prompt.s", verbose="-v" in sys.argv)
```

```python
from asmlib import *
import gen as G
SLOT, CH, NS = 24576, 6144, 6
def k3():
    MF, f2u, srd = G.MF, G.f2u, G.srd
    A3, A3S, EX, FLAGS, MB, WSZ = G.A3, G.A3S, G.F1, G.FLAGS, G.MB, G.WSZ
    k = Kern("g2_kernel", 256, 512, lds=SLOT*NS, nvgpr=256, nagpr=0, nsgpr=80)
    k("""s_load_dwordx2 s[4:5], s[0:1], 0
    s_load_dwordx2 s[6:7], s[0:1], 24
    s_load_dwordx4 s[8:11], s[0:1], 56
    s_load_dwordx2 s[12:13], s[0:1], 72
    s_load_dwordx2 s[14:15], s[0:1], 88""")
    k("s_cmp_ge_u32 s2, 256\ns_cbranch_scc1 .g2_end")
    for i in range(8): k.stamp(i)
    k("""v_lshrrev_b32 v2, 6, v0
    v_and_b32 v1, 63, v0
    s_and_b32 s17, s2, 3
    s_bfe_u32 s18, s2, 0x10002
    v_readfirstlane_b32 s16, v2
    s_lshl_b32 s18, s18, 2
    s_bfe_u32 s54, s2, 0x20003
    s_add_u32 s18, s18, s54
    s_lshr_b32 s19, s2, 5
    s_lshl_b32 s20, s18, 3
    s_add_u32 s20, s20, s19
    v_lshlrev_b32 v2, 4, v1
    s_sub_u32 s54, s17, 1
    s_mul_i32 s54, s54, 37
    s_cmp_eq_u32 s17, 3
    s_cselect_b32 s21, 38, 37
    s_lshl_b32 s49, s54, 16
    s_lshl_b32 s48, s54, 11
    s_add_u32 s48, s48, 65536
    s_cmp_eq_u32 s17, 0
    s_cselect_b32 s21, 32, s21
    s_cselect_b32 s48, 0, s48
    s_cselect_b32 s49, 0, s49""")
    k(f"""s_mul_i32 s54, s18, {8*A3S}
    s_add_u32 s54, s54, {A3 - 2048}
    s_waitcnt lgkmcnt(0)""")
    srd(k, 28, 14, 15, 8*A3S + 2048, "s54")
    srd(k, 24, 8, 9, 3584*2048)
    k("s_cmp_eq_u32 s17, 0\ns_cbranch_scc0 .g2_w2")
    srd(k, 24, 6, 7, 2*MB)
    k(".g2_w2:")
    srd(k, 32, 14, 15, WSZ)
    srd(k, 36, 4, 5, 4*MB)
    srd(k, 40, 12, 13, 4*MB)
    srd(k, 44, 10, 11, 2048)
    k("s_cmp_lt_u32 s16, 4\ns_cbranch_scc1 .g2_comp")
    k(f"""s_sub_u32 s22, s16, 4
    v_lshrrev_b32 v11, 4, v1
    v_bfe_u32 v12, v1, 2, 2
    v_xor_b32 v12, v12, v11
    v_lshlrev_b32 v3, 11, v11
    v_lshl_add_u32 v3, v12, 6, v3
    v_and_b32 v12, 3, v1
    v_lshl_add_u32 v3, v12, 4, v3
    s_lshl_b32 s54, s22, 14
    s_lshl_b32 s55, s19, 8
    s_add_u32 s54, s54, s55
    v_add_u32 v3, s54, v3
    v_add_u32 v4, 7168, v3
    s_and_b32 s54, s22, 1
    s_lshl_b32 s54, s54, 1
    s_xor_b32 s54, s54, s17
    s_lshr_b32 s55, s22, 1
    s_lshl_b32 s55, s55, 2
    s_add_u32 s54, s54, s55
    s_xor_b32 s55, s54, 1
    s_mul_i32 s54, s54, {A3S}
    s_mul_i32 s55, s55, {A3S}
    s_add_u32 s55, s55, 2048
    v_add_u32 v5, s54, v2
    v_add_u32 v6, s55, v2
    s_mul_i32 s50, s22, {CH}
    s_add_u32 s51, s50, {SLOT*NS}""")
    def issue():
        k(f"""s_mov_b32 m0, s50
        s_add_u32 s52, s50, 4096
        buffer_load_dwordx4 v3, s[24:27], s49 offen lds
        buffer_load_dwordx4 v4, s[24:27], s49 offen offset:1024 lds
        buffer_load_dwordx4 v5, s[28:31], s48 offen offset:2048 lds
        buffer_load_dwordx4 v5, s[28:31], s48 offen offset:3072 lds
        s_mov_b32 m0, s52
        s_add_u32 s50, s50, {SLOT}
        buffer_load_dwordx4 v6, s[28:31], s48 offen lds
        buffer_load_dwordx4 v6, s[28:31], s48 offen offset:1024 lds
        s_add_u32 s48, s48, 2048
        s_add_u32 s49, s49, 65536
        s_cmp_eq_u32 s50, s51
        s_cselect_b32 s52, {SLOT*NS}, 0
        s_sub_u32 s50, s50, s52""")
    for s in range(NS): issue()
    k(f"s_sub_u32 s21, s21, {NS}\ns_waitcnt vmcnt({6*(NS-1)})\ns_barrier")
    k.stamp(1)
    k(".g2_lloop:")
    k(f"s_waitcnt vmcnt({6*(NS-2)})\ns_barrier")
    issue()
    k("s_sub_u32 s21, s21, 1\ns_cmp_lg_u32 s21, 0\ns_cbranch_scc1 .g2_lloop")
    k.stamp(2)
    for i in range(NS-2, -1, -1): k(f"s_waitcnt vmcnt({6*i})\ns_barrier")
    k("s_barrier")
    k.prof_end(2, 32)
    k("s_endpgm")
    k(".g2_comp:")
    k(f"""s_and_b32 s22, s16, 1
    s_lshr_b32 s23, s16, 1
    v_lshrrev_b32 v8, 5, v1
    v_bfe_u32 v9, v1, 2, 2
    v_bfe_u32 v10, v1, 4, 1
    v_lshlrev_b32 v10, 5, v10
    v_and_b32 v11, 3, v1
    v_lshl_add_u32 v10, v11, 3, v10
    s_mul_i32 s54, s22, {2*CH}
    v_add_u32 v5, s54, v2
    v_lshl_add_u32 v11, v8, 2, v9
    v_lshl_add_u32 v10, v11, 8, v10
    s_lshl_b32 s54, s23, 1
    v_xor_b32 v11, s54, v9
    v_lshl_add_u32 v6, v11, 6, v10
    v_xor_b32 v11, 1, v11
    v_lshl_add_u32 v7, v11, 6, v10
    s_lshl_b32 s54, s19, 8
    s_lshl_b32 s55, s23, 7
    s_add_u32 s54, s54, s55
    v_lshlrev_b32 v12, 3, v8
    v_add_u32 v12, s54, v12
    s_lshl_b32 s55, s18, 19
    s_lshl_b32 s56, s22, 18
    s_add_u32 s64, s55, s56
    s_lshl_b32 s56, s17, 16
    s_add_u32 s64, s64, s56
    v_and_b32 v11, 31, v1
    v_lshl_add_u32 v13, v11, 11, v12
    v_lshl_add_u32 v14, v8, 3, v13""")
    for nb in range(2):
        for j in range(4):
            t = 192 + (nb*4+j)*2
            k(f"buffer_load_dwordx2 v[{t}:{t+1}], v13, s[36:39], s64 offen offset:{(32*nb+8*j)*2}")
    for nb in range(2):
        for j in range(4):
            t = 208 + (nb*4+j)*2
            k(f"buffer_load_dwordx2 v[{t}:{t+1}], v12, s[44:47], 0 offen offset:{(32*nb+8*j)*2}")
    for a in range(64, 192): k(f"v_mov_b32 v{a}, 0")
    k(f"""s_lshl_b32 s54, s20, 18
    s_lshl_b32 s55, s16, 14
    s_add_u32 s54, s54, s55
    s_add_u32 s54, s54, {EX - 4096}
    s_lshl_b32 s55, s17, 16
    s_add_u32 s60, s54, s55
    s_cmp_eq_u32 s17, 0
    s_cselect_b32 s57, 3, s17
    s_cmp_eq_u32 s57, 3
    s_cselect_b32 s55, 0, s57
    s_add_u32 s55, s55, 1
    s_cmp_eq_u32 s55, 3
    s_cselect_b32 s56, 0, s55
    s_add_u32 s56, s56, 1""")
    for i in range(3):
        k(f"""s_xor_b32 s58, s{55+i}, s17
        s_lshl_b32 s58, s58, 16
        s_lshl_b32 s59, s{55+i}, 12
        s_add_u32 s58, s58, s59
        s_add_u32 s{61+i}, s54, s58""")
    k(f"""s_lshl_b32 s54, s20, 8
    s_lshl_b32 s55, s16, 6
    s_add_u32 s65, s54, s55
    s_add_u32 s65, s65, {FLAGS + G.FL_F1}
    s_lshl_b32 s54, 1, s17
    s_xor_b32 s66, s54, 15
    s_mov_b32 s67, 0
    s_mov_b32 s68, s54
    s_mov_b32 s69, 0
    v_lshlrev_b32 v15, 2, v1
    s_mov_b32 s58, 0xffff0000
    s_mov_b32 s50, 0
    s_mov_b32 s52, {SLOT}""")
    def reads(st, sub):
        X = 16 + 24*st; W = 32 + 24*st
        xs = [f"ds_read_b128 v[{X+4*mb}:{X+4*mb+3}], v5 offset:{(mb>>1)*CH + 2048 + (mb&1)*2048 + sub*1024}" for mb in range(4)]
        ws = [f"ds_read_b64_tr_b16 v[{W+4*nb+2*q}:{W+4*nb+2*q+1}], v{6+nb} offset:{(2*sub+q)*CH}" for nb in range(2) for q in range(2)]
        return [ws[0] + "\n" + ws[1] + "\n" + xs[0], xs[1] + "\n" + xs[2], xs[3] + "\n" + ws[2] + "\n" + ws[3]]
    def mfmas(st):
        X = 16 + 24*st; W = 32 + 24*st
        return [f"{MF} {vr(64+(nb*4+mb)*16,16)}, {vr(W+4*nb,4)}, {vr(X+4*mb,4)}, {vr(64+(nb*4+mb)*16,16)}" for nb in range(2) for mb in range(4)]
    k("s_barrier")
    k.stamp(1)
    for r in reads(0, 0): k(r)
    k(".g2_loop:")
    k("s_waitcnt lgkmcnt(0)")
    mf = mfmas(0); rd = reads(1, 1)
    for i in range(8):
        k(mf[i])
        if i < 3: k(rd[i])
        if i == 3: k(f"s_add_u32 s50, s50, 1\ns_cmp_eq_u32 s50, {NS}\ns_cselect_b32 s51, {-(NS-1)*SLOT}, s52\ns_cselect_b32 s50, 0, s50")
        if i == 5: k("v_add_u32 v5, s51, v5\nv_add_u32 v6, s51, v6\nv_add_u32 v7, s51, v7")
    k("s_waitcnt lgkmcnt(0)\ns_barrier")
    mf = mfmas(1); rd = reads(0, 0)
    for i in range(8):
        k(mf[i])
        if i < 3: k(rd[i])
        if i == 4: k("s_sub_u32 s21, s21, 1\ns_cmp_lg_u32 s21, 0")
    k("s_cbranch_scc1 .g2_loop")
    k.stamp(2)
    k("s_waitcnt lgkmcnt(0)")
    for mb in range(1, 4):
        k("s_add_u32 s60, s60, 4096")
        for nb in range(2):
            a = 64 + (nb*4+mb)*16; P = 16 + ((mb-1)*2+nb)*8
            for i in range(8): k(f"v_cvt_pk_bf16_f32 v{P+i}, v{a+2*i}, v{a+2*i+1}")
            for g in range(2): k(f"buffer_store_dwordx4 v[{P+4*g}:{P+4*g+3}], v2, s[32:35], s60 offen offset:{nb*2048+g*1024} sc1")
    k("s_waitcnt vmcnt(12)")
    for i in range(16): k(f"v_lshlrev_b32 v{144+2*i}, 16, v{192+i}\nv_and_b32 v{145+2*i}, s58, v{192+i}")
    for i in range(16): k(f"v_lshlrev_b32 v{224+2*i}, 16, v{208+i}\nv_and_b32 v{225+2*i}, s58, v{208+i}")
    own = [64 + i for i in range(16)] + [128 + i for i in range(16)]
    oth = [224 + i for i in range(32)]
    pk = lambda r: f"v[{r}:{r+1}]"
    k("s_cmp_eq_u32 s17, 0\ns_cbranch_scc1 .g2_nob")
    for i in range(0, 32, 2): k(f"v_pk_add_f32 {pk(own[i])}, {pk(own[i])}, {pk(oth[i])}")
    k(".g2_nob:")
    k(f"""v_mov_b32 v9, 1
    s_mov_b32 s54, {f2u(-G.LOG2E)}
    s_mov_b32 s55, s54
    s_mov_b32 s56, 1.0
    s_mov_b32 s57, 1.0
    s_mov_b32 s59, {G.POLL}
    s_waitcnt vmcnt(0)""")
    k.stamp(3)
    k(f"""s_mov_b64 exec, s[68:69]
    buffer_store_dword v9, v15, s[32:35], s65 offen sc1
    s_mov_b64 exec, s[66:67]
    .g2_poll:
    buffer_load_dword v10, v15, s[32:35], s65 offen sc1
    s_waitcnt vmcnt(0)
    v_cmp_ne_u32 vcc, 1, v10
    s_sub_u32 s59, s59, 1
    s_cbranch_vccz .g2_pdone
    s_cmp_lg_u32 s59, 0
    s_cbranch_scc1 .g2_poll
    .g2_pdone:
    s_mov_b64 exec, -1""")
    k.stamp(4)
    for nb in range(2):
        for i in range(3):
            R = 80 + (nb*3+i)*8
            for g in range(2): k(f"buffer_load_dwordx4 v[{R+4*g}:{R+4*g+3}], v2, s[32:35], s{61+i} offen offset:{nb*2048+g*1024} sc1")
    def epi(F, S, kq0):
        for nb in range(2):
            f = F[16*nb]; s = S[16*nb]; T = 16; X = 144 + 16*nb; P = 48 + 8*nb
            for i in range(3):
                R = 80 + (nb*3+i)*8
                k(f"s_waitcnt vmcnt({10 - 2*(nb*3+i) + 2*nb})")
                D = s if (i == 2 and not kq0) else T + 16*(i & 1)
                for j in range(8): k(f"v_lshlrev_b32 v{D+2*j}, 16, v{R+j}\nv_and_b32 v{D+2*j+1}, s58, v{R+j}")
                if D != s:
                    for j in range(8): k(f"v_pk_add_f32 {pk(f+2*j)}, {pk(f+2*j)}, {pk(D+2*j)}")
            if nb == 1: k.stamp(5)
            for j in range(8): k(f"v_pk_mul_f32 {pk(T+2*j)}, {pk(f+2*j)}, s[54:55]")
            for j in range(16): k(f"v_exp_f32 v{T+j}, v{T+j}")
            for j in range(8): k(f"v_pk_mul_f32 {pk(f+2*j)}, {pk(f+2*j)}, {pk(s+2*j)}")
            for j in range(8): k(f"v_pk_add_f32 {pk(T+2*j)}, {pk(T+2*j)}, s[56:57]")
            for j in range(16): k(f"v_rcp_f32 v{T+j}, v{T+j}")
            for j in range(8): k(f"v_pk_fma_f32 {pk(X+2*j)}, {pk(f+2*j)}, {pk(T+2*j)}, {pk(X+2*j)}")
            for j in range(8): k(f"v_cvt_pk_bf16_f32 v{P+j}, v{X+2*j}, v{X+2*j+1}")
            for g in range(2):
                for u in range(2): k(f"v_permlane32_swap_b32 v{P+4*g+u}, v{P+4*g+2+u}")
            for g in range(2):
                k(f"buffer_store_dwordx4 v[{P+4*g}:{P+4*g+3}], v14, s[40:43], s64 offen offset:{(32*nb+16*g)*2}")
        k.prof_end(2, 32)
    k("s_cmp_eq_u32 s17, 0\ns_cbranch_scc1 .g2_epi0")
    epi(own, oth, False)
    k("s_endpgm")
    k(".g2_epi0:")
    epi(oth, own, True)
    k(".g2_end:")
    return k
```

```python
import re
TRANS = ("v_exp_f32","v_log_f32","v_rcp_f32","v_rsq_f32","v_sqrt_f32","v_sin_f32","v_cos_f32","v_rcp_iflag_f32")
def regs(tok):
    tok = tok.strip()
    neg = tok.lstrip("-|").rstrip("|")
    m = re.fullmatch(r"([vsa])\[(\d+):(\d+)\]", neg)
    if m: return {(m.group(1), i) for i in range(int(m.group(2)), int(m.group(3)) + 1)}
    m = re.fullmatch(r"([vsa])(\d+)", neg)
    if m: return {(m.group(1), int(m.group(2)))}
    if neg == "vcc": return {("s", "vcc")}
    if neg in ("exec", "exec_lo", "exec_hi"): return {("s", "exec")}
    if neg == "m0": return {("s", "m0")}
    return set()
class I:
    def __init__(s, text):
        s.text = text
        t = text.split(";")[0].strip()
        p = t.split(None, 1)
        s.op = p[0]
        rest = p[1] if len(p) > 1 else ""
        ops = [o.strip() for o in rest.split(",")] if rest else []
        mods = ""
        if ops:
            q = ops[-1].split(None, 1)
            ops[-1] = q[0]
            mods = q[1] if len(q) > 1 else ""
        s.ops, s.mods = ops, mods
        op = s.op
        s.mfma = op.startswith("v_mfma")
        s.valu = op.startswith("v_") and not s.mfma
        s.trans = any(op.startswith(x) for x in TRANS)
        s.dot = op.startswith("v_dot")
        s.ds = op.startswith("ds_")
        s.vmem = op.startswith("buffer_") or op.startswith("global_")
        s.salu = op.startswith("s_")
        s.dpp = "row_" in mods or "quad_perm" in mods or "_dpp" in op
        s.perml = op.startswith("v_permlane")
        s.lds_dma = s.vmem and re.search(r"\blds\b", mods) is not None
        R = [regs(o) for o in ops]
        s.dst, s.src, s.srcC, s.srcAB, s.stdata = set(), set(), set(), set(), set()
        al = lambda L: set().union(*L) if L else set()
        if s.mfma:
            s.dst = R[0]; s.srcAB = R[1] | R[2]; s.srcC = R[3]; s.src = s.srcAB | s.srcC
        elif s.valu:
            if s.perml: s.dst = R[0] | R[1]; s.src = R[0] | R[1]
            elif "_co_" in op: s.dst = R[0] | R[1]; s.src = al(R[2:])
            elif op.startswith("v_cmpx"): s.dst = {("s", "exec")}; s.src = al(R)
            else:
                s.dst = R[0]; s.src = al(R[1:])
                if op.startswith(("v_fmac", "v_dot2c", "v_mac")) or op.startswith("v_writelane"): s.src |= R[0]
                if s.dpp: s.src |= R[0]
            if op.startswith("v_cndmask") and len(ops) == 3: s.src |= {("s", "vcc")}
        elif s.ds:
            if op.startswith("ds_read") or "rtn" in op or "permute" in op or "swizzle" in op: s.dst = R[0]; s.src = al(R[1:])
            else: s.src = al(R)
        elif s.vmem:
            if s.lds_dma: s.src = al(R) | {("s", "m0")}
            elif "_load" in op: s.dst = R[0]; s.src = al(R[1:])
            else:
                s.src = al(R)
                if "x4" in op or "x3" in op: s.stdata = R[0]
        elif s.salu:
            if op.startswith(("s_cmp", "s_cbranch", "s_branch", "s_waitcnt", "s_nop", "s_barrier", "s_sleep", "s_setprio", "s_endpgm")):
                s.src = al(R)
            else:
                s.dst = R[0] if R else set(); s.src = al(R[1:])
                if "saveexec" in op: s.dst = s.dst | {("s", "exec")}
        s.states = int(ops[0]) + 1 if op == "s_nop" else 1
def need(p, c):
    n = 0; why = ""
    def up(k, w):
        nonlocal n, why
        if k > n: n, why = k, w
    pv = {r for r in p.dst if r[0] in "va"}; ps = {r for r in p.dst if r[0] == "s"}
    if p.mfma:
        if c.mfma:
            if pv & c.srcAB: up(12, "mfma D->AB")
            if pv & c.srcC and p.dst != c.srcC: up(10, "mfma D->partial C")
            if pv & c.dst and p.dst != c.srcC and not (pv & c.srcC): up(10, "mfma D->D(waw, non-chain)")
        elif c.valu or c.ds or c.vmem:
            if pv & (c.src | c.dst): up(12, "mfma D->valu/mem")
        if c.valu and p.srcC & c.dst: up(7, "mfma C WAR")
    if p.valu:
        if c.mfma and pv & c.src: up(3 if p.dot else 2, "valu->mfma")
        if p.trans and (c.valu and not c.trans or c.mfma) and pv & c.src: up(1, "trans->valu")
        if p.trans and (c.ds or c.vmem) and pv & c.src: up(1, "trans->mem(conservative)")
        if c.valu and c.dpp and pv & c.src: up(2, "valu->dpp")
        if c.perml and pv & c.src: up(2, "valu->permlane")
        if c.op.startswith(("v_readfirstlane", "v_readlane")) and pv & c.src: up(1, "valu->readlane")
        if ps and c.valu and ps & c.src: up(2, "valu sgpr->valu const")
        if ps and c.vmem and ps & c.src: up(5, "valu sgpr->vmem")
        if ("s", "exec") in ps and (c.mfma or c.perml or c.op.startswith("v_read")): up(4, "valu exec->")
        if ("s", "exec") in ps and c.dpp: up(5, "valu exec->dpp")
        if p.dot and (c.valu or c.ds or c.vmem) and pv & (c.src | c.dst):
            if not (c.op == p.op and pv & c.dst and not (pv & set().union(*[regs(o) for o in c.ops[1:3]]))): up(3, "dot->other")
    if p.salu and ("s", "m0") in p.dst and c.lds_dma: up(1, "m0->dma")
    if p.stdata:
        if c.valu and p.stdata & c.dst: up(2, "store data WAR valu")
        elif p.stdata & c.dst: up(1, "store data WAR")
    return n, why
def check(name, lines):
    ins = []; lab = {}
    for l in lines:
        t = l.split(";")[0].strip()
        if not t: continue
        if t.endswith(":"): lab[t[:-1]] = len(ins); continue
        if t.startswith("."): continue
        ins.append(I(t))
    def succ(i):
        x = ins[i]
        if x.op == "s_endpgm": return []
        if x.op == "s_branch": return [lab[x.ops[0]]]
        r = [i + 1] if i + 1 < len(ins) else []
        if x.op.startswith("s_cbranch"): r.append(lab[x.ops[0]])
        return [j for j in r if j < len(ins)]
    bad = 0
    for i, p in enumerate(ins):
        if not (p.mfma or p.valu or p.stdata or (p.salu and ("s", "m0") in p.dst)): continue
        W = 12 if p.mfma else 5
        seen = set(); st = [(j, 0) for j in succ(i)]
        while st:
            j, d = st.pop()
            if (j, d) in seen or d >= W: continue
            seen.add((j, d))
            n, why = need(p, ins[j])
            if n > d:
                print(f"HAZARD {name}: [{p.text}] -> [{ins[j].text}] need {n} have {d} ({why})"); bad += 1
            for k in succ(j): st.append((k, d + ins[j].states))
    return bad

def _parse(lines):
    ins = []; lab = {}; idx = []
    for n, l in enumerate(lines):
        t = l.split(";")[0].strip()
        if not t: continue
        if t.endswith(":"): lab[t[:-1]] = len(ins); continue
        if t.startswith("."): continue
        ins.append(I(t)); idx.append(n)
    return ins, lab, idx
def fix(name, lines, verbose=False):
    lines = list(lines); tot = 0
    while True:
        ins, lab, idx = _parse(lines + ["s_endpgm"])
        def succ(i):
            x = ins[i]
            if x.op == "s_endpgm": return []
            if x.op == "s_branch": return [lab[x.ops[0]]]
            r = [i + 1] if i + 1 < len(ins) else []
            if x.op.startswith("s_cbranch"): r.append(lab[x.ops[0]])
            return [j for j in r if j < len(ins)]
        short = {}
        for i, p in enumerate(ins):
            if not (p.mfma or p.valu or p.stdata or (p.salu and ("s", "m0") in p.dst)): continue
            W = 12 if p.mfma else 5
            seen = set(); st = [(j, 0) for j in succ(i)]
            while st:
                j, d = st.pop()
                if (j, d) in seen or d >= W: continue
                seen.add((j, d))
                n, why = need(p, ins[j])
                if n > d and short.get(j, (0,))[0] < n - d: short[j] = (n - d, p.text, why)
                for k in succ(j): st.append((k, d + ins[j].states))
        if not short: return lines, tot
        j = min(short)
        todo = []; last = -100
        for j in sorted(short):
            if j - last > 13: todo.append(j); last = j
        for j in reversed(todo):
            n = short[j][0]; tot += n
            if verbose: print(f"{name}: nop {n} before [{ins[j].text}] after [{short[j][1]}] {short[j][2]}")
            lines.insert(idx[j], f"    s_nop {n-1}")
```

```python
import sys, struct
sys.path.insert(0, "dev")
from asmlib import *
import haz
MB = 1 << 20
XN, A3, KVP, ZP, FLAGS, F1, GG = 1*MB, 5*MB, 24*MB, 26*MB, 27*MB, 32*MB, 40*MB
A3S = 288 * 1024
FL_K2, FL_F1, FL_G = 0, 4096, 20480
STATS, CSUM = 28*MB, 28*MB + 65536
WSZ = 0x10000000
def f2u(x): return "0x%08x" % struct.unpack("<I", struct.pack("<f", x))[0]
LOG2E = 1.4426950408889634
POLL = 1 << 14
PF3 = True
import os
EXP = os.environ.get('EXP','')

def srd(k, d, lo, hi, nrec, off=None):
    if off is None:
        k(f"s_mov_b32 s{d}, s{lo}\ns_mov_b32 s{d+1}, s{hi}")
    else:
        k(f"s_add_u32 s{d}, s{lo}, {off}\ns_addc_u32 s{d+1}, s{hi}, 0")
    k(f"s_mov_b32 s{d+2}, {nrec}\ns_mov_b32 s{d+3}, 0x20000")

def xsum_half(k, a, t, op="v_add_f32"):
    k(f"v_mov_b32 v{t}, v{a}\nv_permlane32_swap_b32 v{a}, v{t}\n{op} v{a}, v{a}, v{t}")

def rnd_bf16(k, a):
    k(f"v_cvt_pk_bf16_f32 v{a}, v{a}, v{a}\nv_lshlrev_b32 v{a}, 16, v{a}")

def k1():
    k = Kern("ln_kernel", 256, 512, lds=512, nvgpr=64, nsgpr=32)
    k("s_load_dwordx2 s[4:5], s[0:1], 0\ns_load_dwordx2 s[6:7], s[0:1], 88")
    k("s_cmp_ge_u32 s2, 256\ns_cbranch_scc1 .ln_end")
    for i in range(8): k.stamp(i)
    k("""v_and_b32 v1, 7, v0
    v_lshrrev_b32 v2, 6, v0
    v_bfe_u32 v3, v0, 3, 3
    v_lshl_add_u32 v3, v2, 4, v3
    s_lshl_b32 s3, s2, 14
    v_lshlrev_b32 v4, 11, v1
    v_lshl_add_u32 v4, v3, 4, v4
    v_add_u32 v4, s3, v4""")
    k("s_waitcnt lgkmcnt(0)")
    srd(k, 8, 4, 5, 4*MB)
    srd(k, 12, 6, 7, WSZ)
    k("buffer_load_dwordx4 v[8:11], v4, s[8:11], 0 offen\nbuffer_load_dwordx4 v[12:15], v4, s[8:11], 0 offen offset:128")
    k(f"""s_lshr_b32 s16, s2, 2
    s_lshl_b32 s16, s16, 16
    s_and_b32 s17, s2, 3
    s_lshl_b32 s17, s17, 7
    s_add_u32 s16, s16, s17
    s_add_u32 s16, s16, {XN}
    v_lshrrev_b32 v5, 1, v3
    v_lshlrev_b32 v5, 10, v5
    v_and_b32 v6, 1, v3
    v_lshl_add_u32 v5, v6, 9, v5
    v_lshl_add_u32 v5, v1, 4, v5
    v_add_u32 v5, s16, v5
    s_mov_b32 s18, 4096
    v_lshlrev_b32 v6, 6, v1
    v_lshl_add_u32 v7, v2, 3, v6""")
    k(f"""v_cmp_gt_u32 vcc, 64, v0
    s_lshl_b32 s19, s2, 8
    s_add_u32 s19, s19, {FLAGS}
    v_lshlrev_b32 v40, 2, v0
    v_mov_b32 v41, 0
    s_and_saveexec_b64 s[20:21], vcc
    s_cbranch_execz .ln_nz
    buffer_store_dword v41, v40, s[12:15], s19 offen sc1
    .ln_nz:
    s_mov_b64 exec, s[20:21]""")
    k("s_mov_b32 s22, 0xffff0000")
    k("s_waitcnt vmcnt(0)")
    for i in range(8):
        k(f"v_lshlrev_b32 v{16+2*i}, 16, v{8+i}\nv_and_b32 v{17+2*i}, s22, v{8+i}")
    def red3(a, t):
        k(f"v_add_f32_dpp v{a}, v{a}, v{a} row_ror:8 row_mask:0xf bank_mask:0xf")
        k(f"v_mov_b32 v{t}, v{a}\nv_permlane16_swap_b32 v{a}, v{t}\nv_add_f32 v{a}, v{a}, v{t}")
        xsum_half(k, a, t)
    for i in range(4):
        k(f"v_add_f32 v{32+i}, v{16+4*i}, v{17+4*i}\nv_add_f32 v{36+i}, v{18+4*i}, v{19+4*i}")
    for i in range(4): k(f"v_add_f32 v{32+i}, v{32+i}, v{36+i}")
    k("v_add_f32 v32, v32, v33\nv_add_f32 v34, v34, v35\nv_add_f32 v32, v32, v34")
    red3(32, 33)
    k(f"v_mul_f32 v32, {f2u(1/128)}, v32")
    for i in range(16): k(f"v_sub_f32 v{40+i}, v{16+i}, v32")
    for i in range(4): k(f"v_mul_f32 v{36+i}, v{40+i}, v{40+i}")
    for i in range(4, 16): k(f"v_fmac_f32 v{36+(i&3)}, v{40+i}, v{40+i}")
    k("v_add_f32 v36, v36, v37\nv_add_f32 v38, v38, v39\nv_add_f32 v33, v36, v38")
    red3(33, 34)
    k("ds_write_b64 v7, v[32:33]\ns_waitcnt lgkmcnt(0)\ns_barrier")
    for i in range(4): k(f"ds_read_b128 v[{40+4*i}:{43+4*i}], v6 offset:{16*i}")
    k("s_waitcnt lgkmcnt(0)")
    k("""v_add_f32 v32, v40, v42
    v_add_f32 v33, v44, v46
    v_add_f32 v34, v48, v50
    v_add_f32 v35, v52, v54
    v_add_f32 v36, v41, v43
    v_add_f32 v37, v45, v47
    v_add_f32 v38, v49, v51
    v_add_f32 v39, v53, v55
    v_add_f32 v32, v32, v33
    v_add_f32 v34, v34, v35
    v_add_f32 v36, v36, v37
    v_add_f32 v38, v38, v39
    v_add_f32 v32, v32, v34
    v_add_f32 v36, v36, v38
    v_mul_f32 v32, 0x3e000000, v32""")
    for i in range(8): k(f"v_sub_f32 v{40+2*i}, v{40+2*i}, v32")
    k("v_mul_f32 v33, v40, v40\nv_mul_f32 v34, v42, v42")
    for i in range(2, 8): k(f"v_fmac_f32 v{33+(i&1)}, v{40+2*i}, v{40+2*i}")
    k(f"""v_add_f32 v33, v33, v34
    v_fmac_f32 v36, {f2u(128.0)}, v33
    v_mul_f32 v36, {f2u(1/1024)}, v36""")
    rnd_bf16(k, 32); rnd_bf16(k, 36)
    k(f"v_add_f32 v36, {f2u(1e-5)}, v36"); rnd_bf16(k, 36)
    k("v_sqrt_f32 v36, v36"); rnd_bf16(k, 36)
    k("v_rcp_f32 v36, v36")
    for i in range(16): k(f"v_sub_f32 v{16+i}, v{16+i}, v32")
    for i in range(8): k(f"v_cvt_pk_bf16_f32 v{8+i}, v{16+2*i}, v{17+2*i}")
    for i in range(8): k(f"v_lshlrev_b32 v{16+2*i}, 16, v{8+i}\nv_and_b32 v{17+2*i}, s22, v{8+i}")
    for i in range(16): k(f"v_mul_f32 v{16+i}, v{16+i}, v36")
    for i in range(8): k(f"v_cvt_pk_bf16_f32 v{8+i}, v{16+2*i}, v{17+2*i}")
    k("buffer_store_dwordx4 v[8:11], v5, s[12:15], 0 offen\nbuffer_store_dwordx4 v[12:15], v5, s[12:15], s18 offen")
    k.prof_end(0, 12)
    k(".ln_end:")
    return k

def interleave(mf, others, first=0):
    out = []; n = len(mf); m = len(others); o = 0
    for i, x in enumerate(mf):
        out.append(x)
        if i >= first:
            tgt = min(m, -(-m * (i - first + 1) // max(1, (n - first - 1)))) if n - first - 1 > 0 else m
            while o < tgt: out.append(others[o]); o += 1
    out += others[o:]
    return "\n".join(out)

MF = "v_mfma_f32_32x32x16_bf16"
SLOT2, CH2, NS2 = 30720, 3840, 5
L_WPHI = 153600
L_T, L_R, L_ZL, L_KF, L_ZB = 0, 69632, 135168, 137216, 145408
L_AF, L_BF, L_RS = 157696, 159744, 161792
RPG = int(os.environ.get('RPG', 2)); DOFF = int(os.environ.get('DOFF', 0))
XST = 2048 if 'xlin' in EXP else 64
def k2():
    global PF3
    if 'nopf' in EXP: PF3 = False
    k = Kern("g1_kernel", 256, 512, lds=163840, nvgpr=256, nsgpr=80)
    k("s_load_dwordx4 s[4:7], s[0:1], 8\ns_load_dwordx4 s[8:11], s[0:1], 40\ns_load_dwordx4 s[72:75], s[0:1], 80\ns_load_dwordx2 s[66:67], s[0:1], 0\ns_load_dwordx2 s[62:63], s[0:1], 24\ns_load_dwordx2 s[64:65], s[0:1], 56")
    k("s_cmp_ge_u32 s2, 256\ns_cbranch_scc1 .g1_end")
    for i in range(8): k.stamp(i)
    k("""v_lshrrev_b32 v2, 6, v0
    v_and_b32 v1, 63, v0
    s_and_b32 s44, s2, 7
    s_lshr_b32 s45, s2, 3
    v_readfirstlane_b32 s14, v2
    s_lshr_b32 s19, s45, 4
    s_and_b32 s17, s45, 7
    s_bfe_u32 s18, s45, 0x10003
    s_lshl_b32 s44, s44, 1
    s_add_u32 s18, s18, s44
    s_and_b32 s15, s14, 3
    s_lshr_b32 s16, s14, 2""")
    k("""v_lshrrev_b32 v7, 5, v1
    v_bfe_u32 v8, v1, 2, 2
    v_bfe_u32 v9, v1, 4, 1
    v_lshlrev_b32 v9, 5, v9
    v_and_b32 v10, 3, v1
    v_lshl_add_u32 v9, v10, 3, v9
    v_cmp_le_u32 vcc, 28, v1
    v_lshlrev_b32 v2, 4, v1
    s_mul_i32 s39, s14, 3840
    s_mul_i32 s44, s15, 7680
    v_cndmask_b32 v10, 0, 1, vcc
    v_mul_u32_u24 v11, 28, v10
    v_sub_u32 v11, v1, v11
    v_and_b32 v12, 31, v1
    v_bfe_u32 v13, v1, 2, 2
    v_xor_b32 v13, v13, v7
    v_lshlrev_b32 v13, 4, v13
    v_lshl_add_u32 v13, v12, 6, v13
    v_add_u32 v5, s44, v13
    v_xor_b32 v243, 32, v5
    v_lshrrev_b32 v12, 2, v1
    v_lshrrev_b32 v13, 4, v1
    v_xor_b32 v13, v13, v1
    v_and_b32 v13, 3, v13
    v_lshlrev_b32 v13, 4, v13
    v_lshl_add_u32 v244, v12, 11, v13
    v_add_u32 v245, 31744, v244
    v_mov_b32 v248, 0
    v_mov_b32 v254, 0
    v_lshlrev_b32 v246, 5, v1
    s_mov_b32 s56, 0x3f803f80""")
    k(f"""v_mul_u32_u24 v6, 7680, v7
    v_mul_u32_u24 v12, 448, v8
    v_add3_u32 v6, v6, v12, v9
    s_lshl_b32 s44, s14, 2
    v_add_u32 v10, s44, v10""")
    if 'xlin' in EXP: k("v_lshlrev_b32 v244, 4, v1\nv_mov_b32 v245, v244")
    k("s_waitcnt lgkmcnt(0)")
    k(f"""s_lshl_b32 s44, s17, 3
    s_add_u32 s44, s44, s14
    s_lshl_b32 s44, s44, 16""")
    srd(k, 24, 66, 67, 65536, "s44")
    srd(k, 32, 66, 67, 4*MB)
    k("""s_lshl_b32 s44, s2, 3
    s_add_u32 s57, s44, s14
    s_lshl_b32 s44, s57, 11
    buffer_load_dwordx4 v[192:195], v246, s[32:35], s44 offen
    buffer_load_dwordx4 v[196:199], v246, s[32:35], s44 offen offset:16""")
    srd(k, 28, 74, 75, WSZ)
    srd(k, 68, 72, 73, 256)
    k(f"""s_cmp_eq_u32 s14, 0
    s_cbranch_scc0 .g1_nz
    s_lshl_b32 s44, s2, 8
    s_add_u32 s44, s44, {FLAGS + FL_F1}
    v_lshlrev_b32 v12, 2, v1
    buffer_store_dword v254, v12, s[28:31], s44 offen
    s_cmp_eq_u32 s2, 0
    s_cbranch_scc0 .g1_nz
    s_memrealtime s[44:45]
    s_waitcnt lgkmcnt(0)
    v_mov_b32 v12, s44
    v_mov_b32 v13, s45
    s_mov_b64 exec, 1
    buffer_store_dwordx2 v[12:13], v254, s[68:71], 0 offen sc1
    s_mov_b64 exec, -1
    .g1_nz:""")
    k("s_cmp_eq_u32 s17, 0\ns_cselect_b32 s36, 256, 0\ns_mov_b32 s59, -1\ns_mov_b32 s78, 0\ns_mov_b32 s79, 0\ns_mov_b32 s40, 4\ns_mov_b32 s58, 0\ns_mov_b32 s46, 0\ns_mov_b32 s47, 0xffff0000")
    k(f"""s_lshl_b32 s44, s19, 4
    s_add_u32 s44, s44, s18
    s_mul_i32 s60, s44, 7168
    s_lshl_b32 s45, s16, 12
    s_add_u32 s60, s60, s45
    s_add_u32 s60, s60, {CSUM}
    s_lshl_b32 s61, s17, 11
    s_lshl_b32 s45, s15, 9
    s_add_u32 s61, s61, s45
    s_add_u32 s61, s61, {STATS}""")
    k(f"""s_lshl_b32 s44, s17, 3
    s_lshl_b32 s45, s15, 1
    s_add_u32 s44, s44, s45
    s_mul_i32 s48, s44, {A3S}
    s_add_u32 s48, s48, {A3}""")
    k("s_cmp_eq_u32 s19, 0\ns_cbranch_scc1 .g1_qkv")

    def dma(k):
        return ["s_mov_b32 m0, s39\ns_mov_b64 exec, s[42:43]\nbuffer_load_dwordx4 v3, s[20:23], s37 offen lds\nbuffer_load_dwordx4 v4, s[20:23], s37 offen offset:896 lds\ns_mov_b64 exec, -1",
                "s_add_u32 m0, s39, 1792\ns_add_u32 s37, s37, s38\nbuffer_load_dwordx4 v244, s[24:27], s36 offen lds\nbuffer_load_dwordx4 v245, s[24:27], s36 offen offset:1024 lds\ns_add_u32 s36, s36, 64\ns_cmp_eq_u32 s36, s59\ns_cselect_b32 s36, s78, s36\ns_cselect_b32 s37, s79, s37\ns_cmp_eq_u32 s36, 2048\ns_cselect_b32 s36, 0x100000, s36\ns_cselect_b32 s37, 0x10000000, s37"]
    def adv_w():
        return f"s_add_u32 s39, s39, {SLOT2}\ns_add_u32 s46, s46, 1\ns_cmp_eq_u32 s46, {NS2}\ns_cselect_b32 s41, {-(NS2-1)*SLOT2}, s49\ns_cselect_b32 s46, 0, s46\ns_cselect_b32 s44, {NS2*SLOT2}, 0\ns_sub_u32 s39, s39, s44"
    def reads(st, sub, woffs):
        X = 16 + 24*st; W = 24 + 24*st
        r = []
        xa = "v243" if sub else "v5"
        r.append(f"ds_read_b128 v[{X}:{X+3}], {xa} offset:1792")
        for nb, wo in enumerate(woffs):
            for q in range(2):
                r.append(f"ds_read_b64_tr_b16 v[{W+4*nb+2*q}:{W+4*nb+2*q+1}], v6 offset:{(4*sub+q)*CH2+wo}")
            if nb == 0: r.append(f"ds_read_b128 v[{X+4}:{X+7}], {xa} offset:{CH2+1792}")
        return r
    def mfmas(st, nnb, swap=()):
        X = 16 + 24*st; W = 24 + 24*st
        r = []
        for nb in range(nnb):
            for mb in range(2):
                a = 64 + (nb*2+mb)*16
                wf, xf = vr(W+4*nb, 4), vr(X+4*mb, 4)
                if nb in swap: wf, xf = xf, wf
                r.append(f"{MF} {vr(a,16)}, {wf}, {xf}, {vr(a,16)}")
        return r
    def prologue_dmas(nacc):
        k(f"s_mov_b32 s49, {SLOT2}\ns_mov_b32 s12, s39\ns_add_u32 s13, s39, {NS2*SLOT2}")
        z = [f"v_mov_b32 v{a}, 0" for a in range(64, 64 + nacc)]
        k2_ = Kern("tmp_kernel", 1, 1); rowstats(k2_); st = [x.strip() for x in k2_.lines]
        for s in range(4):
            if s == 2: k("s_waitcnt vmcnt(8)")
            for gi, g in enumerate(dma4()):
                k(g)
                if s < 2:
                    q = 4*s + gi; k("\n".join(z[q*nacc//8:(q+1)*nacc//8]))
                else:
                    q = 4*(s-2) + gi; n = len(st) - 4; k("\n".join(st[q*n//8:(q+1)*n//8]))
        k("""s_lshl_b32 s36, s17, 8
        s_lshr_b32 s44, s38, 6
        s_mul_i32 s37, s36, s44
        s_add_u32 s59, s36, 256
        s_cmp_le_u32 s17, 1
        s_cselect_b32 s78, 2, 1
        s_lshl_b32 s78, s78, 8
        s_mul_i32 s79, s78, s44""")
        k("\n".join(st[-4:]))
    def fifth():
        for g in dma4(): k(g)
    def dots(st, cnb):
        if cnb is None: return []
        W = 24 + 24*st + 4*cnb
        return [f"v_dot2c_f32_bf16 v248, s56, v{W+t}" for t in range(4)]
    def dma4():
        return ["s_mov_b32 m0, s39\ns_mov_b64 exec, s[42:43]\nbuffer_load_dwordx4 v3, s[20:23], s37 offen lds\ns_mov_b64 exec, -1",
                "s_mov_b64 exec, s[42:43]\nbuffer_load_dwordx4 v4, s[20:23], s37 offen offset:896 lds\ns_mov_b64 exec, -1\ns_add_u32 m0, s39, 1792\ns_add_u32 s37, s37, s38",
                f"buffer_load_dwordx4 v244, s[24:27], s36 offen lds\ns_add_u32 s39, s39, {SLOT2}\ns_cmp_eq_u32 s39, s13\ns_cselect_b32 s39, s12, s39",
                "buffer_load_dwordx4 v245, s[24:27], s36 offen offset:1024 lds\ns_add_u32 s36, s36, 64\ns_cmp_eq_u32 s36, s59\ns_cselect_b32 s36, s78, s36\ns_cselect_b32 s37, s79, s37\ns_cmp_eq_u32 s36, 2048\ns_cselect_b32 s36, 0x100000, s36\ns_cselect_b32 s37, 0x10000000, s37"]
    def place(mf, rd, dm, dt):
        n = len(mf); slots = [[] for _ in range(n)]
        per = RPG
        for i, r in enumerate(rd): slots[min(n-1, i // per)].append(r)
        first = max(0, n - len(dm) - DOFF)
        for i, d in enumerate(dm): slots[min(n-1, first + i)].append(d)
        for i, d in enumerate(dt): slots[min(n-1, n - len(dt) + i)].append(d)
        return "\n".join(x for i in range(n) for x in [mf[i]] + slots[i])
    def mainloop(tag, woffs, swap, cnb, early):
        nnb = len(woffs)
        rdadv = f"s_add_u32 s46, s46, 1\ns_cmp_eq_u32 s46, {NS2}\ns_cselect_b32 s41, {-(NS2-1)*SLOT2}, s49\ns_cselect_b32 s46, 0, s46"
        k(f".g1_loop{tag}:")
        k("s_waitcnt lgkmcnt(0)")
        k(place(mfmas(0, nnb, swap), reads(1, 1, woffs) + [rdadv + "\nv_add_u32 v5, s41, v5\nv_add_u32 v6, s41, v6\nv_add_u32 v243, s41, v243"], dma4() if early else [], dots(0, cnb)))
        k("s_sub_u32 s40, s40, 1\ns_waitcnt vmcnt(12) lgkmcnt(0)\ns_barrier")
        k(place(mfmas(1, nnb, swap), reads(0, 0, woffs), [] if early else dma4(), dots(1, cnb)))
        k(f"s_cmp_lg_u32 s40, 0\ns_cbranch_scc1 .g1_loop{tag}")
    def rowstats(k):
        def red(a, t):
            for sh in (8, 4, 2, 1): k(f"v_add_f32_dpp v{a}, v{a}, v{a} row_ror:{sh} row_mask:0xf bank_mask:0xf")
            k(f"v_mov_b32 v{t}, v{a}\nv_permlane16_swap_b32 v{a}, v{t}\nv_add_f32 v{a}, v{a}, v{t}")
            xsum_half(k, a, t)
        for i in range(8): k(f"v_lshlrev_b32 v{200+2*i}, 16, v{192+i}\nv_and_b32 v{201+2*i}, s47, v{192+i}")
        for i in range(4): k(f"v_add_f32 v{216+i}, v{200+4*i}, v{201+4*i}\nv_add_f32 v{220+i}, v{202+4*i}, v{203+4*i}")
        for i in range(4): k(f"v_add_f32 v{216+i}, v{216+i}, v{220+i}")
        k("v_add_f32 v216, v216, v217\nv_add_f32 v218, v218, v219\nv_add_f32 v216, v216, v218")
        red(216, 217)
        k(f"v_mul_f32 v216, {f2u(1/1024)}, v216")
        for i in range(16): k(f"v_sub_f32 v{200+i}, v{200+i}, v216")
        for i in range(4): k(f"v_mul_f32 v{220+i}, v{200+i}, v{200+i}")
        for i in range(4, 16): k(f"v_fmac_f32 v{220+(i&3)}, v{200+i}, v{200+i}")
        k("v_add_f32 v220, v220, v221\nv_add_f32 v222, v222, v223\nv_add_f32 v217, v220, v222")
        red(217, 218)
        k(f"v_mul_f32 v217, {f2u(1/1024)}, v217")
        rnd_bf16(k, 217)
        k(f"v_add_f32 v217, {f2u(1e-5)}, v217\nv_sub_f32 v216, 0, v216"); rnd_bf16(k, 217)
        k(f"""v_sqrt_f32 v217, v217
        s_lshl_b32 s57, s57, 3
        s_add_u32 s57, s57, {STATS}
        v_cvt_pk_bf16_f32 v216, v216, v217
        v_and_b32 v217, s47, v216
        v_rcp_f32 v217, v217
        s_mov_b64 exec, 1
        buffer_store_dwordx2 v[216:217], v254, s[28:31], s57 offen sc1
        s_mov_b64 exec, -1""")
    def loops(tag, woffs, swap, early, pf=None, late=None):
        nnb = len(woffs)
        L = lambda x: f".g1_{x}{tag}"
        for r in reads(0, 0, woffs): k(r)
        if not early: fifth()
        k(f"s_branch .g1_loop{tag}")
        for mw in range(nnb):
            mainloop(f"{tag}d{mw}", woffs, swap, mw, early)
            k(f"s_branch {L('pub')}")
        mainloop(tag, woffs, swap, None, early)
        k(f"""s_add_u32 s58, s58, 1
        s_mov_b32 s40, 4
        s_cmp_eq_u32 s58, 2
        s_cbranch_scc1 .g1_loop{tag}
        s_cmp_eq_u32 s58, 3
        s_cbranch_scc1 {L('p2')}
        s_cmp_eq_u32 s58, 4
        s_cbranch_scc1 {L('p3')}
        s_cmp_eq_u32 s58, 5
        s_cbranch_scc1 {L('p4')}
        s_cmp_eq_u32 s58, 6
        s_cbranch_scc1 {L('done')}
        s_sub_u32 s78, s59, 0
        s_sub_u32 s59, s59, 256
        s_lshr_b32 s44, s38, 6
        s_mul_i32 s79, s78, s44""")
        if 'ph' in EXP: k.stamp(3)
        for mw in range(nnb): k(f"s_cmp_eq_u32 s15, {mw}\ns_cbranch_scc1 .g1_loop{tag}d{mw}")
        k(f"s_branch .g1_loop{tag}\n{L('p2')}:")
        if 'ph' in EXP: k.stamp(4)
        k("s_mov_b32 s40, 12")
        if pf: pf()
        k(f"""s_cmp_eq_u32 s14, 0
        s_cbranch_scc0 .g1_loop{tag}
        v_mov_b32 v248, 1
        s_mov_b64 exec, 1
        buffer_atomic_add v248, v254, s[68:71], 0 offen offset:8 sc1
        s_mov_b64 exec, -1
        s_branch .g1_loop{tag}""")
        k(f"{L('pub')}:")
        xsum_half(k, 248, 249)
        k(f"""v_and_b32 v249, 31, v1
        v_lshlrev_b32 v249, 5, v249
        s_lshl_b32 s44, s15, 10
        s_lshl_b32 s45, s17, 2
        s_add_u32 s44, s44, s45
        s_add_u32 s44, s44, s60
        s_mov_b32 exec_hi, 0
        buffer_store_dword v248, v249, s[28:31], s44 offen sc1
        s_mov_b64 exec, -1
        s_mov_b32 s58, 2
        s_mov_b32 s40, 4
        s_branch .g1_loop{tag}""")
        k(f"{L('p3')}:")
        if 'ph' in EXP: k.stamp(5)
        k(f"""buffer_load_dwordx4 v[216:219], v254, s[68:71], 0 offen
        s_branch .g1_loop{tag}
        {L('p4')}:""")
        if 'ph' in EXP: k.stamp(6)
        k(f"""
        s_mov_b32 s44, {POLL}
        {L('p4l')}:
        v_readfirstlane_b32 s45, v218
        v_readfirstlane_b32 s76, v216
        v_readfirstlane_b32 s77, v217
        s_cmp_eq_u32 s45, 256
        s_cbranch_scc1 {L('p4ok')}
        buffer_load_dwordx4 v[216:219], v254, s[68:71], 0 offen sc1
        s_sub_u32 s44, s44, 1
        s_waitcnt vmcnt(0)
        s_cmp_lg_u32 s44, 0
        s_cbranch_scc1 {L('p4l')}
        {L('p4ok')}:
        v_and_b32 v249, 31, v1
        v_lshlrev_b32 v248, 3, v249
        v_lshlrev_b32 v249, 5, v249
        v_lshl_add_u32 v249, v7, 4, v249
        buffer_load_dwordx2 v[240:241], v248, s[28:31], s61 offen sc1
        buffer_load_dwordx2 v[246:247], v248, s[28:31], s61 offen offset:256 sc1""")
        for nb in range(nnb): k(f"buffer_load_dwordx4 v[{224+4*nb}:{227+4*nb}], v249, s[28:31], s60 offen offset:{1024*nb} sc1")
        if late: late()
        k(f"s_branch .g1_loop{tag}\n{L('done')}:")
    def fixup(nnb, swap, b1, extra=None):
        k("s_waitcnt vmcnt(0) lgkmcnt(0)")
        if extra: extra()
        for i in (18, 19, 22, 23): k(f"v_mov_b32 v{i}, 0")
        k("""v_mov_b32 v56, v241
        v_mov_b32 v57, v241
        v_mov_b32 v58, v247
        v_mov_b32 v59, v247
        v_cmp_gt_u32 vcc, 32, v1
        s_mov_b32 s44, 0x01000100
        v_perm_b32 v16, v240, v240, s44
        v_perm_b32 v20, v246, v246, s44
        v_cndmask_b32 v17, 0, v240, vcc
        v_cndmask_b32 v21, 0, v246, vcc
        v_cndmask_b32 v16, 0, v16, vcc
        v_cndmask_b32 v20, 0, v20, vcc""")
        for nb in range(nnb):
            c = 224 + 4*nb; a = 24 + 4*nb
            k(f"v_add_f32 v{c}, v{c}, v{c+1}\nv_add_f32 v{c+2}, v{c+2}, v{c+3}\nv_mov_b32 v{a+2}, 0\nv_add_f32 v{c}, v{c}, v{c+2}\nv_mov_b32 v{a+3}, 0")
        for nb in range(nnb): k(f"v_mov_b32 v{225+4*nb}, v{224+4*nb}")
        for nb in range(nnb): k(f"v_permlane32_swap_b32 v{224+4*nb}, v{225+4*nb}")
        for nb in range(nnb): k(f"v_add_f32 v{224+4*nb}, v{224+4*nb}, v{225+4*nb}")
        for nb in range(nnb): k(f"v_cvt_pk_bf16_f32 v{225+4*nb}, v{224+4*nb}, v{224+4*nb}")
        for nb in range(nnb): k(f"v_lshlrev_b32 v{225+4*nb}, 16, v{225+4*nb}")
        for nb in range(nnb): k(f"v_sub_f32 v{224+4*nb}, v{224+4*nb}, v{225+4*nb}")
        for nb in range(nnb): k(f"v_cvt_pk_bf16_f32 v{226+4*nb}, v{224+4*nb}, v{224+4*nb}")
        for nb in range(nnb): k(f"v_lshlrev_b32 v{226+4*nb}, 16, v{226+4*nb}")
        for nb in range(nnb): k(f"v_sub_f32 v{224+4*nb}, v{224+4*nb}, v{226+4*nb}")
        for nb in range(nnb):
            k(f"v_cvt_pk_bf16_f32 v{24+4*nb}, v{225+4*nb}, v{226+4*nb}")
            if b1: k(f"v_lshlrev_b32 v{250+nb}, 16, v{250+nb}\nv_cvt_pk_bf16_f32 v{25+4*nb}, v{224+4*nb}, v{250+nb}")
            else: k(f"v_cvt_pk_bf16_f32 v{25+4*nb}, v{224+4*nb}, 0")
        for x in mfmas(0, nnb, swap): k(x)

    srd(k, 20, 8, 9, 1024*7168)
    k(f"""s_mov_b32 s38, {32*7168}
    s_mul_i32 s37, s36, {7168//2}
    s_mov_b32 s42, -1
    s_mov_b32 s43, 0x00ffffff
    s_mul_i32 s44, s18, 448
    v_mul_u32_u24 v3, 7168, v10
    v_lshl_add_u32 v3, v11, 4, v3
    v_add_u32 v3, s44, v3
    v_add_u32 v4, {2*7168-896}, v3
    s_lshl_b32 s45, s16, 8
    s_add_u32 s44, s44, s45
    v_add_u32 v6, s45, v6
    v_and_b32 v12, 31, v1
    v_lshl_add_u32 v12, v12, 1, s44""")
    prologue_dmas(128)
    srd(k, 32, 10, 11, 3584*2)
    k(f"""s_mul_i32 s44, s18, 14
    s_lshl_b32 s45, s16, 3
    s_add_u32 s44, s44, s45
    s_add_u32 s44, s44, 64
    s_lshl_b32 s44, s44, 10
    s_add_u32 s48, s48, s44
    s_add_u32 s50, s48, {A3S}
    s_mov_b32 s51, {f2u(-2.3022081)}
    s_mov_b32 s52, {f2u(-0.10294324)}""")
    k("s_waitcnt vmcnt(13)\ns_barrier")
    k.stamp(1)
    k("s_cmp_eq_u32 s16, 0\ns_cbranch_scc0 .g1_f3")
    pk = lambda r: f"v[{r}:{r+1}]"
    def gelu_tile(nb, mb):
        a = 64 + (nb*2+mb)*16
        T = 192 + 16*((nb*2+mb) & 1)
        P = 224 + 8*((nb*2+mb) & 1)
        for i in range(0, 16, 2): k(f"v_pk_mul_f32 {pk(a+i)}, {pk(a+i)}, {pk(56+2*mb)}")
        for i in range(0, 16, 2): k(f"v_pk_mul_f32 {pk(T+i)}, {pk(a+i)}, {pk(a+i)}")
        for i in range(0, 16, 2): k(f"v_pk_fma_f32 {pk(T+i)}, {pk(T+i)}, s[52:53], v[60:61]")
        for i in range(0, 16, 2): k(f"v_pk_mul_f32 {pk(T+i)}, {pk(T+i)}, {pk(a+i)}")
        for i in range(16): k(f"v_exp_f32 v{T+i}, v{T+i}")
        for i in range(0, 16, 2): k(f"v_pk_add_f32 {pk(T+i)}, {pk(T+i)}, s[54:55]")
        for i in range(16): k(f"v_rcp_f32 v{T+i}, v{T+i}")
        for i in range(0, 16, 2): k(f"v_pk_mul_f32 {pk(T+i)}, {pk(T+i)}, {pk(a+i)}")
        for i in range(8): k(f"v_cvt_pk_bf16_f32 v{P+i}, v{T+2*i}, v{T+2*i+1}")
        for ks in range(2):
            off = (2*nb+ks)*1024
            va = "v2" if off < 4096 else "v14"
            k(f"buffer_store_dwordx4 v[{P+4*ks}:{P+4*ks+3}], {va}, s[28:31], s{48+2*mb} offen offset:{off & 4095}")
    for tag, nnb in (("f4", 4), ("f3", 3)):
        if tag == "f3": k(".g1_f3:")
        woffs = [64*nb for nb in range(nnb)]
        def pf():
            srd(k, 72, 64, 65, 3584*2048)
            k("""s_sub_u32 s44, s2, 128
            s_lshl_b32 s44, s44, 3
            s_add_u32 s44, s44, s14
            s_mul_i32 s45, s44, 7168
            s_lshl_b32 s44, s44, 11
            v_lshlrev_b32 v13, 7, v1
            s_mov_b64 exec, s[42:43]
            buffer_load_dword v220, v13, s[72:75], s45 offen""")
            srd(k, 72, 62, 63, 2*MB)
            k("""s_mov_b64 exec, 0xffff
            buffer_load_dword v221, v13, s[72:75], s44 offen
            s_mov_b64 exec, -1""")
        def late():
            for nb in range(nnb): k(f"buffer_load_ushort v{250+nb}, v12, s[32:35], 0 offen offset:{64*nb}")
        loops(tag, woffs, (), nnb == 3, pf if PF3 else None, late)
        k.stamp(2)
        k("v_mov_b32 v60, s51\nv_mov_b32 v61, s51\nv_add_u32 v14, 4096, v2\ns_mov_b32 s53, s52\ns_mov_b32 s54, 1.0\ns_mov_b32 s55, 1.0")
        fixup(nnb, (), True)
        for nb in range(nnb):
            for mb in range(2): gelu_tile(nb, mb)
        if 'ph' not in EXP: k.stamp(3)
        k.prof_end(1, 28)
        k("s_endpgm")

    k(".g1_qkv:")
    srd(k, 20, 4, 5, 1024*6144)
    srd(k, 32, 6, 7, 65536)
    k(f"""s_mov_b32 s38, {32*6144}
    s_mul_i32 s37, s36, {6144//2}
    s_mov_b32 s42, 0xf0ffffff
    s_mov_b32 s43, 0x000fffff
    s_lshl_b32 s44, s18, 7
    v_mul_u32_u24 v3, 6144, v10
    v_lshrrev_b32 v12, 3, v11
    v_lshl_add_u32 v3, v12, 11, v3
    v_and_b32 v12, 7, v11
    v_lshl_add_u32 v3, v12, 4, v3
    v_add_u32 v3, s44, v3
    v_add_u32 v4, {2*6144-896}, v3
    s_lshl_b32 s45, s16, 6
    v_add_u32 v6, s45, v6
    s_lshl_b32 s53, s18, 1
    s_add_u32 s53, s53, s16""")
    k(f"""s_cmp_lt_u32 s15, 2
    s_cbranch_scc0 .g1_nophi
    s_lshl_b32 s44, s53, 11
    s_lshl_b32 s45, s15, 10
    s_add_u32 s44, s44, s45
    s_lshl_b32 s54, s16, 11
    s_add_u32 s45, s45, s54
    s_add_u32 m0, s45, {L_WPHI}
    s_nop 0
    buffer_load_dwordx4 v2, s[32:35], s44 offen lds
    .g1_nophi:""")
    prologue_dmas(96)
    k(f"""v_lshl_add_u32 v12, v7, 2, v8
    v_lshl_add_u32 v13, v12, 6, v9
    s_lshl_b32 s44, s16, 11
    s_add_u32 s44, s44, {L_WPHI}
    v_add_u32 v13, s44, v13""")
    k("s_waitcnt vmcnt(13)\ns_barrier")
    k.stamp(1)
    for ks in range(2):
        for q in range(2):
            k(f"ds_read_b64_tr_b16 v[{160+4*ks+2*q}:{161+4*ks+2*q}], v13 offset:{(16*ks+8*q)*64}")
    woffs = [0, 128, 256]
    k("s_cmp_eq_u32 s16, 0\ns_cbranch_scc0 .g1_q1")
    loops("q", woffs, (2,), False)
    k("s_branch .g1_qdone\n.g1_q1:")
    loops("r", woffs, (2,), True)
    k(".g1_qdone:")
    k.stamp(2)
    def rsrows():
        k(f"""s_lshl_b32 s44, s14, 8
        s_add_u32 s44, s44, {L_RS}
        v_and_b32 v253, 31, v1
        v_lshl_add_u32 v253, v253, 2, s44
        ds_write_b32 v253, v241
        ds_write_b32 v253, v247 offset:128
        v_lshl_add_u32 v253, v7, 4, s44
        s_waitcnt lgkmcnt(0)""")
        for mb in range(2):
            for j in range(4): k(f"ds_read_b128 v[{192+16*mb+4*j}:{195+16*mb+4*j}], v253 offset:{128*mb+32*j}")
    fixup(3, (2,), False, rsrows)
    def pack(dst, src):
        for i in range(8): k(f"v_cvt_pk_bf16_f32 v{dst+i}, v{src+2*i}, v{src+2*i+1}")
    k(f"""s_mul_i32 s44, s14, 8704
    v_and_b32 v14, 31, v1
    v_mul_u32_u24 v14, 136, v14
    v_lshl_add_u32 v14, v7, 3, v14
    v_add_u32 v14, s44, v14
    v_mul_u32_u24 v15, 136, v12
    v_add3_u32 v15, v15, v9, s44
    s_mov_b32 s55, {f2u(LOG2E)}""")
    k("s_waitcnt lgkmcnt(0)")
    for t in (2, 3, 0, 1):
        for i in range(0, 16, 2): k(f"v_pk_mul_f32 {pk(64+16*t+i)}, {pk(64+16*t+i)}, {pk(56+2*(t&1))}")
    for i in range(0, 32, 2): k(f"v_pk_mul_f32 {pk(128+i)}, {pk(128+i)}, {pk(192+i)}")
    for mb in range(2): pack(16 + 8*mb, 96 + 16*mb)
    for mb in range(2): pack(48 + 8*mb, 64 + 16*mb)
    for mb in range(2):
        for ks in range(2):
            k(f"{MF} {vr(64+16*mb,16)}, {vr(160+4*ks,4)}, {vr(16+8*mb+4*ks,4)}, {'0' if ks == 0 else vr(64+16*mb,16)}")
    for mb in range(2):
        for ks in range(2):
            k(f"{MF} {vr(96+16*mb,16)}, {vr(160+4*ks,4)}, {vr(48+8*mb+4*ks,4)}, {'0' if ks == 0 else vr(96+16*mb,16)}")
    for mb in range(2): pack(32 + 8*mb, 128 + 16*mb)
    k("s_barrier")
    def softmax(P, D):
        E, N = 128, 144
        for i in range(8): k(f"v_cvt_pk_bf16_f32 v{E+i}, v{P+2*i}, v{P+2*i+1}")
        for i in range(8): k(f"v_lshlrev_b32 v{P+2*i}, 16, v{E+i}\nv_and_b32 v{P+2*i+1}, s47, v{E+i}")
        k(f"v_max3_f32 v168, v{P}, v{P+1}, v{P+2}\nv_min3_f32 v169, v{P}, v{P+1}, v{P+2}")
        k(f"v_max3_f32 v170, v{P+3}, v{P+4}, v{P+5}\nv_min3_f32 v171, v{P+3}, v{P+4}, v{P+5}")
        for i in range(6, 14, 4):
            k(f"v_max3_f32 v168, v168, v{P+i}, v{P+i+1}\nv_min3_f32 v169, v169, v{P+i}, v{P+i+1}")
            k(f"v_max3_f32 v170, v170, v{P+i+2}, v{P+i+3}\nv_min3_f32 v171, v171, v{P+i+2}, v{P+i+3}")
        k(f"v_max3_f32 v168, v168, v{P+14}, v{P+15}\nv_min3_f32 v169, v169, v{P+14}, v{P+15}")
        k("v_max_f32 v168, v168, v170\nv_min_f32 v169, v169, v171")
        k("v_mov_b32 v170, v168\nv_mov_b32 v171, v169\ns_nop 0\nv_permlane32_swap_b32 v168, v170\nv_permlane32_swap_b32 v169, v171")
        k("v_max_f32 v168, v168, v170\nv_min_f32 v169, v169, v171")
        k("v_mul_f32 v168, s55, v168\nv_mul_f32 v169, s55, v169")
        for i in range(16):
            k(f"v_fma_f32 v{E+i}, v{P+i}, s55, -v168\nv_fma_f32 v{N+i}, -v{P+i}, s55, v169")
        for i in range(16): k(f"v_exp_f32 v{E+i}, v{E+i}\nv_exp_f32 v{N+i}, v{N+i}")
        k(f"v_add_f32 v168, v{E}, v{E+1}\nv_add_f32 v169, v{N}, v{N+1}\nv_add_f32 v170, v{E+2}, v{E+3}\nv_add_f32 v171, v{N+2}, v{N+3}")
        for i in range(4, 16, 2):
            k(f"v_add_f32 v168, v168, v{E+i}\nv_add_f32 v169, v169, v{N+i}\nv_add_f32 v170, v170, v{E+i+1}\nv_add_f32 v171, v171, v{N+i+1}")
        k("v_add_f32 v168, v168, v170\nv_add_f32 v169, v169, v171")
        k("v_mov_b32 v170, v168\nv_mov_b32 v171, v169\ns_nop 0\nv_permlane32_swap_b32 v168, v170\nv_permlane32_swap_b32 v169, v171")
        k("v_add_f32 v168, v168, v170\nv_add_f32 v169, v169, v171\nv_rcp_f32 v168, v168\nv_rcp_f32 v169, v169")
        for i in range(16): k(f"v_mul_f32 v{E+i}, v{E+i}, v168\nv_mul_f32 v{N+i}, v{N+i}, v169")
        for i in range(8): k(f"v_cvt_pk_bf16_f32 v{D+i}, v{E+2*i}, v{E+2*i+1}")
        for i in range(8): k(f"v_cvt_pk_bf16_f32 v{D+8+i}, v{N+2*i}, v{N+2*i+1}")
    for mb in range(2):
        D = 208 + 0
        D = 176 + 16*mb
        softmax(64 + 16*mb, D)
        for s in range(2):
            for j in range(4):
                k(f"ds_write_b64 v14, v[{D+8*s+2*j}:{D+8*s+2*j+1}] offset:{32*mb*136 + (32*s+8*j)*2}")
    k("s_waitcnt lgkmcnt(0)")
    n = 0
    for fb in range(2):
        for mb in range(2):
            for ks in range(2):
                f = 128 + ((fb*2+mb)*2+ks)*4
                for q in range(2):
                    k(f"ds_read_b64_tr_b16 v[{f+2*q}:{f+2*q+1}], v15 offset:{(32*mb+16*ks+8*q)*136 + fb*64}")
        if fb == 0: k("v_mov_b32 v168, 0\nv_mov_b32 v169, 0")
    for fb in range(2):
        k(f"s_waitcnt lgkmcnt({8 if fb == 0 else 0})")
        i = 0
        for mb in range(2):
            for ks in range(2):
                f = 128 + ((fb*2+mb)*2+ks)*4
                k(f"{MF} {vr(224+16*fb,16)}, {vr(f,4)}, {vr(32+8*mb+4*ks,4)}, {'0' if i == 0 else vr(224+16*fb,16)}")
                for t in range(4): k(f"v_dot2c_f32_bf16 v{168+fb}, s56, v{f+t}")
                i += 1
    k("v_permlane32_swap_b32 v168, v169\nv_add_f32 v168, v168, v169")
    k(f"""s_lshl_b32 s44, s14, 13
    v_add_u32 v14, s44, v2
    v_add_u32 v14, {L_R}, v14
    s_lshl_b32 s44, s14, 8
    v_lshlrev_b32 v13, 2, v1
    v_add_u32 v15, s44, v13
    v_add_u32 v15, {L_ZL}, v15
    ds_write_b32 v15, v168""")
    for qd in range(8): k(f"ds_write_b128 v14, v[{224+4*qd}:{227+4*qd}] offset:{qd*1024}")
    k(f"""s_lshl_b32 s44, s16, 15
    s_lshl_b32 s45, s15, 11
    s_add_u32 s44, s44, s45
    v_add_u32 v14, s44, v2
    v_add_u32 v14, {L_R}, v14
    s_lshl_b32 s44, s16, 10
    v_add_u32 v15, s44, v13
    v_add_u32 v15, {L_ZL}, v15
    s_lshl_b32 s57, s53, 16
    s_add_u32 s57, s57, s45
    s_add_u32 s57, s57, {KVP}
    s_lshl_b32 s44, s17, 13
    s_add_u32 s58, s57, s44
    s_lshl_b32 s59, s53, 11
    s_add_u32 s59, s59, {ZP}
    s_lshl_b32 s44, s17, 8
    s_add_u32 s60, s59, s44""")
    k("s_waitcnt lgkmcnt(0)\ns_barrier")
    for ww in range(4):
        for qq in range(2): k(f"ds_read_b128 v[{128+8*ww+4*qq}:{131+8*ww+4*qq}], v14 offset:{ww*8192+qq*1024}")
    for ww in range(4): k(f"ds_read_b32 v{168+ww}, v15 offset:{ww*256}")
    k("s_waitcnt lgkmcnt(4)")
    for i in range(8): k(f"v_add_f32 v{128+i}, v{128+i}, v{136+i}\nv_add_f32 v{144+i}, v{144+i}, v{152+i}")
    for i in range(8): k(f"v_add_f32 v{208+i}, v{128+i}, v{144+i}")
    k("buffer_store_dwordx4 v[208:211], v2, s[28:31], s58 offen sc1\nbuffer_store_dwordx4 v[212:215], v2, s[28:31], s58 offen offset:1024 sc1")
    k("""s_waitcnt lgkmcnt(0)
    v_add_f32 v168, v168, v169
    v_add_f32 v170, v170, v171
    v_add_f32 v216, v168, v170
    s_cmp_eq_u32 s15, 0
    s_cbranch_scc0 .g1_noz
    buffer_store_dword v216, v13, s[28:31], s60 offen sc1
    .g1_noz:""")
    if 'ph' not in EXP: k.stamp(3)
    softmax(96, 176)
    k("s_waitcnt vmcnt(0)\ns_barrier")
    if 'ph' not in EXP: k.stamp(4)
    k(f"""s_lshl_b32 s61, s18, 7
    s_add_u32 s61, s61, {FLAGS + FL_K2}
    s_cmp_eq_u32 s14, 0
    s_cbranch_scc0 .g1_nofl
    s_lshl_b32 s44, s17, 3
    v_mov_b32 v14, s44
    v_mov_b32 v220, s76
    v_mov_b32 v221, s77
    s_mov_b64 exec, 1
    buffer_store_dwordx2 v[220:221], v14, s[28:31], s61 offen sc1
    s_mov_b64 exec, -1
    .g1_nofl:""")
    softmax(112, 192)
    if 'ph' not in EXP: k.stamp(5)
    k(f"""s_cmp_eq_u32 s14, 0
    s_cbranch_scc0 .g1_polled
    s_mov_b32 s44, {POLL}
    v_lshlrev_b32 v14, 3, v1
    s_mov_b64 exec, 0xff
    .g1_poll:
    buffer_load_dwordx2 v[220:221], v14, s[28:31], s61 offen sc1
    s_waitcnt vmcnt(0)
    v_cmp_ne_u64 vcc, s[76:77], v[220:221]
    s_sub_u32 s44, s44, 1
    s_cbranch_vccz .g1_pdone
    s_sleep 1
    s_cmp_lg_u32 s44, 0
    s_cbranch_scc1 .g1_poll
    .g1_pdone:
    s_mov_b64 exec, -1
    .g1_polled:
    s_barrier""")
    if 'ph' not in EXP: k.stamp(6)
    for mm in range(8):
        k(f"buffer_load_dwordx4 v[{64+8*mm}:{67+8*mm}], v2, s[28:31], s57 offen sc1\nbuffer_load_dwordx4 v[{68+8*mm}:{71+8*mm}], v2, s[28:31], s57 offen offset:1024 sc1")
        if mm < 7: k("s_add_u32 s57, s57, 8192")
    k("s_cmp_eq_u32 s15, 0\ns_cbranch_scc0 .g1_noz2")
    for mm in range(8): k(f"buffer_load_dword v{128+mm}, v13, s[28:31], s59 offen offset:{256*mm} sc1")
    k(f"""s_lshl_b32 s44, s16, 7
    v_lshlrev_b32 v14, 1, v1
    v_add_u32 v14, s44, v14
    v_add_u32 v14, {L_ZB}, v14
    s_waitcnt vmcnt(0)
    v_add_f32 v128, v128, v129
    v_add_f32 v130, v130, v131
    v_add_f32 v132, v132, v133
    v_add_f32 v134, v134, v135
    v_add_f32 v128, v128, v130
    v_add_f32 v132, v132, v134
    v_add_f32 v128, v128, v132
    v_cvt_pk_bf16_f32 v128, v128, v128
    ds_write_b16 v14, v128
    .g1_noz2:""")
    k(f"""s_lshl_b32 s44, s16, 12
    v_add_u32 v14, s44, v2
    v_add_u32 v14, {L_KF}, v14
    s_lshl_b32 s45, s15, 10
    v_add_u32 v15, s45, v14
    s_lshl_b32 s44, s16, 7
    v_lshlrev_b32 v12, 3, v7
    v_add_u32 v12, s44, v12
    v_add_u32 v12, {L_ZB}, v12
    s_waitcnt vmcnt(0)""")
    for st in (32, 16, 8):
        for i in range(st): k(f"v_add_f32 v{64+i}, v{64+i}, v{64+st+i}")
    for i in range(4): k(f"v_cvt_pk_bf16_f32 v{64+i}, v{64+2*i}, v{65+2*i}")
    k("ds_write_b128 v15, v[64:67]\ns_waitcnt lgkmcnt(0)\ns_barrier")
    for f in range(4): k(f"ds_read_b128 v[{64+4*f}:{67+4*f}], v14 offset:{1024*f}")
    for f in range(4):
        for q in range(2): k(f"ds_read_b64 v[{80+4*f+2*q}:{81+4*f+2*q}], v12 offset:{(16*f+8*q)*2}")
    k(f"""s_lshl_b32 s44, s53, 11
    s_add_u32 s48, s48, s44
    s_add_u32 s50, s48, {A3S}
    s_waitcnt lgkmcnt(0)""")
    for mb in range(2):
        for f in range(4):
            k(f"{MF} {vr(128+16*mb,16)}, {vr(80+4*f,4)}, {vr(176+16*mb+4*f,4)}, {'0' if f == 0 else vr(128+16*mb,16)}")
        for f in range(4):
            k(f"{MF} {vr(96+16*mb,16)}, {vr(64+4*f,4)}, {vr(176+16*mb+4*f,4)}, {'0' if f == 0 else vr(96+16*mb,16)}")
    for mb in range(2):
        d = 128 + 16*mb; o = 96 + 16*mb; P = 16 + 8*mb
        rnd_bf16(k, d); k(f"v_add_f32 v{d}, {f2u(1e-6)}, v{d}"); rnd_bf16(k, d); k(f"v_rcp_f32 v{d}, v{d}")
        pack(P, o)
        for i in range(8): k(f"v_lshlrev_b32 v{o+2*i}, 16, v{P+i}\nv_and_b32 v{o+2*i+1}, s47, v{P+i}")
        for i in range(16): k(f"v_mul_f32 v{o+i}, v{o+i}, v{d}")
        pack(P, o)
        for ks in range(2):
            k(f"buffer_store_dwordx4 v[{P+4*ks}:{P+4*ks+3}], v2, s[28:31], s{48+2*mb} offen offset:{1024*ks}")
    k.prof_end(1, 28)
    k(".g1_end:")
    return k

def build(path, which=None, verbose=False):
    from gen3 import k3
    which = which or (k2, k3)
    ks = []
    for f in which:
        k = f()
        k.lines, n = haz.fix(k.name, k.lines, verbose)
        assert haz.check(k.name, k.lines + ["s_endpgm"]) == 0
        print(k.name, "lines", len(k.lines), "nop states", n)
        ks.append(k)
    open(path, "w").write(module(ks))
if __name__ == "__main__":
    if "-p" in sys.argv:
        Kern.prof = True
        build("prof%s.s" % EXP); sys.exit(0)
    build("recurrent_scan__linear_kernel_hedgehog__dense_activation_gelu__prompt.s", verbose="-v" in sys.argv)
```

```python
import sys, struct
sys.path.insert(0, "dev")
from asmlib import *
import haz
MB = 1 << 20
XN, A3, KVP, ZP, FLAGS, F1, GG = 1*MB, 5*MB, 24*MB, 26*MB, 27*MB, 32*MB, 40*MB
A3S = 288 * 1024
FL_K2, FL_F1, FL_G = 0, 4096, 20480
STATS, CSUM = 28*MB, 28*MB + 65536
WSZ = 0x10000000
def f2u(x): return "0x%08x" % struct.unpack("<I", struct.pack("<f", x))[0]
LOG2E = 1.4426950408889634
POLL = 1 << 14
PF3 = True
import os
EXP = os.environ.get('EXP','')

def srd(k, d, lo, hi, nrec, off=None):
    if off is None:
        k(f"s_mov_b32 s{d}, s{lo}\ns_mov_b32 s{d+1}, s{hi}")
    else:
        k(f"s_add_u32 s{d}, s{lo}, {off}\ns_addc_u32 s{d+1}, s{hi}, 0")
    k(f"s_mov_b32 s{d+2}, {nrec}\ns_mov_b32 s{d+3}, 0x20000")

def xsum_half(k, a, t, op="v_add_f32"):
    k(f"v_mov_b32 v{t}, v{a}\nv_permlane32_swap_b32 v{a}, v{t}\n{op} v{a}, v{a}, v{t}")

def rnd_bf16(k, a):
    k(f"v_cvt_pk_bf16_f32 v{a}, v{a}, v{a}\nv_lshlrev_b32 v{a}, 16, v{a}")

def k1():
    k = Kern("ln_kernel", 256, 512, lds=512, nvgpr=64, nsgpr=32)
    k("s_load_dwordx2 s[4:5], s[0:1], 0\ns_load_dwordx2 s[6:7], s[0:1], 88")
    k("s_cmp_ge_u32 s2, 256\ns_cbranch_scc1 .ln_end")
    for i in range(8): k.stamp(i)
    k("""v_and_b32 v1, 7, v0
    v_lshrrev_b32 v2, 6, v0
    v_bfe_u32 v3, v0, 3, 3
    v_lshl_add_u32 v3, v2, 4, v3
    s_lshl_b32 s3, s2, 14
    v_lshlrev_b32 v4, 11, v1
    v_lshl_add_u32 v4, v3, 4, v4
    v_add_u32 v4, s3, v4""")
    k("s_waitcnt lgkmcnt(0)")
    srd(k, 8, 4, 5, 4*MB)
    srd(k, 12, 6, 7, WSZ)
    k("buffer_load_dwordx4 v[8:11], v4, s[8:11], 0 offen\nbuffer_load_dwordx4 v[12:15], v4, s[8:11], 0 offen offset:128")
    k(f"""s_lshr_b32 s16, s2, 2
    s_lshl_b32 s16, s16, 16
    s_and_b32 s17, s2, 3
    s_lshl_b32 s17, s17, 7
    s_add_u32 s16, s16, s17
    s_add_u32 s16, s16, {XN}
    v_lshrrev_b32 v5, 1, v3
    v_lshlrev_b32 v5, 10, v5
    v_and_b32 v6, 1, v3
    v_lshl_add_u32 v5, v6, 9, v5
    v_lshl_add_u32 v5, v1, 4, v5
    v_add_u32 v5, s16, v5
    s_mov_b32 s18, 4096
    v_lshlrev_b32 v6, 6, v1
    v_lshl_add_u32 v7, v2, 3, v6""")
    k(f"""v_cmp_gt_u32 vcc, 64, v0
    s_lshl_b32 s19, s2, 8
    s_add_u32 s19, s19, {FLAGS}
    v_lshlrev_b32 v40, 2, v0
    v_mov_b32 v41, 0
    s_and_saveexec_b64 s[20:21], vcc
    s_cbranch_execz .ln_nz
    buffer_store_dword v41, v40, s[12:15], s19 offen sc1
    .ln_nz:
    s_mov_b64 exec, s[20:21]""")
    k("s_mov_b32 s22, 0xffff0000")
    k("s_waitcnt vmcnt(0)")
    for i in range(8):
        k(f"v_lshlrev_b32 v{16+2*i}, 16, v{8+i}\nv_and_b32 v{17+2*i}, s22, v{8+i}")
    def red3(a, t):
        k(f"v_add_f32_dpp v{a}, v{a}, v{a} row_ror:8 row_mask:0xf bank_mask:0xf")
        k(f"v_mov_b32 v{t}, v{a}\nv_permlane16_swap_b32 v{a}, v{t}\nv_add_f32 v{a}, v{a}, v{t}")
        xsum_half(k, a, t)
    for i in range(4):
        k(f"v_add_f32 v{32+i}, v{16+4*i}, v{17+4*i}\nv_add_f32 v{36+i}, v{18+4*i}, v{19+4*i}")
    for i in range(4): k(f"v_add_f32 v{32+i}, v{32+i}, v{36+i}")
    k("v_add_f32 v32, v32, v33\nv_add_f32 v34, v34, v35\nv_add_f32 v32, v32, v34")
    red3(32, 33)
    k(f"v_mul_f32 v32, {f2u(1/128)}, v32")
    for i in range(16): k(f"v_sub_f32 v{40+i}, v{16+i}, v32")
    for i in range(4): k(f"v_mul_f32 v{36+i}, v{40+i}, v{40+i}")
    for i in range(4, 16): k(f"v_fmac_f32 v{36+(i&3)}, v{40+i}, v{40+i}")
    k("v_add_f32 v36, v36, v37\nv_add_f32 v38, v38, v39\nv_add_f32 v33, v36, v38")
    red3(33, 34)
    k("ds_write_b64 v7, v[32:33]\ns_waitcnt lgkmcnt(0)\ns_barrier")
    for i in range(4): k(f"ds_read_b128 v[{40+4*i}:{43+4*i}], v6 offset:{16*i}")
    k("s_waitcnt lgkmcnt(0)")
    k("""v_add_f32 v32, v40, v42
    v_add_f32 v33, v44, v46
    v_add_f32 v34, v48, v50
    v_add_f32 v35, v52, v54
    v_add_f32 v36, v41, v43
    v_add_f32 v37, v45, v47
    v_add_f32 v38, v49, v51
    v_add_f32 v39, v53, v55
    v_add_f32 v32, v32, v33
    v_add_f32 v34, v34, v35
    v_add_f32 v36, v36, v37
    v_add_f32 v38, v38, v39
    v_add_f32 v32, v32, v34
    v_add_f32 v36, v36, v38
    v_mul_f32 v32, 0x3e000000, v32""")
    for i in range(8): k(f"v_sub_f32 v{40+2*i}, v{40+2*i}, v32")
    k("v_mul_f32 v33, v40, v40\nv_mul_f32 v34, v42, v42")
    for i in range(2, 8): k(f"v_fmac_f32 v{33+(i&1)}, v{40+2*i}, v{40+2*i}")
    k(f"""v_add_f32 v33, v33, v34
    v_fmac_f32 v36, {f2u(128.0)}, v33
    v_mul_f32 v36, {f2u(1/1024)}, v36""")
    rnd_bf16(k, 32); rnd_bf16(k, 36)
    k(f"v_add_f32 v36, {f2u(1e-5)}, v36"); rnd_bf16(k, 36)
    k("v_sqrt_f32 v36, v36"); rnd_bf16(k, 36)
    k("v_rcp_f32 v36, v36")
    for i in range(16): k(f"v_sub_f32 v{16+i}, v{16+i}, v32")
    for i in range(8): k(f"v_cvt_pk_bf16_f32 v{8+i}, v{16+2*i}, v{17+2*i}")
    for i in range(8): k(f"v_lshlrev_b32 v{16+2*i}, 16, v{8+i}\nv_and_b32 v{17+2*i}, s22, v{8+i}")
    for i in range(16): k(f"v_mul_f32 v{16+i}, v{16+i}, v36")
    for i in range(8): k(f"v_cvt_pk_bf16_f32 v{8+i}, v{16+2*i}, v{17+2*i}")
    k("buffer_store_dwordx4 v[8:11], v5, s[12:15], 0 offen\nbuffer_store_dwordx4 v[12:15], v5, s[12:15], s18 offen")
    k.prof_end(0, 12)
    k(".ln_end:")
    return k

def interleave(mf, others, first=0):
    out = []; n = len(mf); m = len(others); o = 0
    for i, x in enumerate(mf):
        out.append(x)
        if i >= first:
            tgt = min(m, -(-m * (i - first + 1) // max(1, (n - first - 1)))) if n - first - 1 > 0 else m
            while o < tgt: out.append(others[o]); o += 1
    out += others[o:]
    return "\n".join(out)

MF = "v_mfma_f32_32x32x16_bf16"
SLOT2, CH2, NS2 = 30720, 3840, 5
L_WPHI = 153600
L_T, L_R, L_ZL, L_KF, L_ZB = 0, 69632, 135168, 137216, 145408
L_AF, L_BF, L_RS = 157696, 159744, 161792
RPG = int(os.environ.get('RPG', 2)); DOFF = int(os.environ.get('DOFF', 0))
XST = 2048 if 'xlin' in EXP else 64
def k2():
    global PF3
    if 'nopf' in EXP: PF3 = False
    k = Kern("g1_kernel", 256, 512, lds=163840, nvgpr=256, nsgpr=80)
    k("s_load_dwordx4 s[4:7], s[0:1], 8\ns_load_dwordx4 s[8:11], s[0:1], 40\ns_load_dwordx4 s[72:75], s[0:1], 80\ns_load_dwordx2 s[66:67], s[0:1], 0\ns_load_dwordx2 s[62:63], s[0:1], 24\ns_load_dwordx2 s[64:65], s[0:1], 56")
    k("s_cmp_ge_u32 s2, 256\ns_cbranch_scc1 .g1_end")
    for i in range(8): k.stamp(i)
    k("""v_lshrrev_b32 v2, 6, v0
    v_and_b32 v1, 63, v0
    s_and_b32 s44, s2, 7
    s_lshr_b32 s45, s2, 3
    v_readfirstlane_b32 s14, v2
    s_lshr_b32 s19, s45, 4
    s_and_b32 s17, s45, 7
    s_bfe_u32 s18, s45, 0x10003
    s_lshl_b32 s44, s44, 1
    s_add_u32 s18, s18, s44
    s_and_b32 s15, s14, 3
    s_lshr_b32 s16, s14, 2""")
    k("""v_lshrrev_b32 v7, 5, v1
    v_bfe_u32 v8, v1, 2, 2
    v_bfe_u32 v9, v1, 4, 1
    v_lshlrev_b32 v9, 5, v9
    v_and_b32 v10, 3, v1
    v_lshl_add_u32 v9, v10, 3, v9
    v_cmp_le_u32 vcc, 28, v1
    v_lshlrev_b32 v2, 4, v1
    s_mul_i32 s39, s14, 3840
    s_mul_i32 s44, s15, 7680
    v_cndmask_b32 v10, 0, 1, vcc
    v_mul_u32_u24 v11, 28, v10
    v_sub_u32 v11, v1, v11
    v_and_b32 v12, 31, v1
    v_bfe_u32 v13, v1, 2, 2
    v_xor_b32 v13, v13, v7
    v_lshlrev_b32 v13, 4, v13
    v_lshl_add_u32 v13, v12, 6, v13
    v_add_u32 v5, s44, v13
    v_xor_b32 v243, 32, v5
    v_lshrrev_b32 v12, 2, v1
    v_lshrrev_b32 v13, 4, v1
    v_xor_b32 v13, v13, v1
    v_and_b32 v13, 3, v13
    v_lshlrev_b32 v13, 4, v13
    v_lshl_add_u32 v244, v12, 11, v13
    v_add_u32 v245, 31744, v244
    v_mov_b32 v248, 0
    v_mov_b32 v254, 0
    v_lshlrev_b32 v246, 5, v1
    s_mov_b32 s56, 0x3f803f80""")
    k(f"""v_mul_u32_u24 v6, 7680, v7
    v_mul_u32_u24 v12, 448, v8
    v_add3_u32 v6, v6, v12, v9
    s_lshl_b32 s44, s14, 2
    v_add_u32 v10, s44, v10""")
    if 'xlin' in EXP: k("v_lshlrev_b32 v244, 4, v1\nv_mov_b32 v245, v244")
    k("s_waitcnt lgkmcnt(0)")
    k(f"""s_lshl_b32 s44, s17, 3
    s_add_u32 s44, s44, s14
    s_lshl_b32 s44, s44, 16""")
    srd(k, 24, 66, 67, 65536, "s44")
    srd(k, 32, 66, 67, 4*MB)
    k("""s_lshl_b32 s44, s2, 3
    s_add_u32 s57, s44, s14
    s_lshl_b32 s44, s57, 11
    buffer_load_dwordx4 v[192:195], v246, s[32:35], s44 offen
    buffer_load_dwordx4 v[196:199], v246, s[32:35], s44 offen offset:16""")
    srd(k, 28, 74, 75, WSZ)
    srd(k, 68, 72, 73, 256)
    k(f"""s_or_b32 s44, s14, s2
    s_cmp_eq_u32 s44, 0
    s_cbranch_scc0 .g1_nz
    s_memrealtime s[44:45]
    s_waitcnt lgkmcnt(0)
    v_mov_b32 v12, s44
    v_mov_b32 v13, s45
    s_mov_b64 exec, 1
    buffer_store_dwordx2 v[12:13], v254, s[68:71], 0 offen sc1
    s_mov_b64 exec, -1
    .g1_nz:""")
    k("s_cmp_eq_u32 s17, 0\ns_cselect_b32 s36, 256, 0\ns_mov_b32 s59, -1\ns_mov_b32 s78, 0\ns_mov_b32 s79, 0\ns_mov_b32 s40, 4\ns_mov_b32 s58, 0\ns_mov_b32 s46, 0\ns_mov_b32 s47, 0xffff0000")
    k(f"""s_lshl_b32 s44, s19, 4
    s_add_u32 s44, s44, s18
    s_mul_i32 s60, s44, 7168
    s_lshl_b32 s45, s16, 12
    s_add_u32 s60, s60, s45
    s_add_u32 s60, s60, {CSUM}
    s_lshl_b32 s61, s17, 11
    s_lshl_b32 s45, s15, 9
    s_add_u32 s61, s61, s45
    s_add_u32 s61, s61, {STATS}""")
    k(f"""s_lshl_b32 s44, s17, 3
    s_lshl_b32 s45, s15, 1
    s_add_u32 s44, s44, s45
    s_mul_i32 s48, s44, {A3S}
    s_add_u32 s48, s48, {A3}""")
    k("s_cmp_eq_u32 s19, 0\ns_cbranch_scc1 .g1_qkv")

    def dma(k):
        return ["s_mov_b32 m0, s39\ns_mov_b64 exec, s[42:43]\nbuffer_load_dwordx4 v3, s[20:23], s37 offen lds\nbuffer_load_dwordx4 v4, s[20:23], s37 offen offset:896 lds\ns_mov_b64 exec, -1",
                "s_add_u32 m0, s39, 1792\ns_add_u32 s37, s37, s38\nbuffer_load_dwordx4 v244, s[24:27], s36 offen lds\nbuffer_load_dwordx4 v245, s[24:27], s36 offen offset:1024 lds\ns_add_u32 s36, s36, 64\ns_cmp_eq_u32 s36, s59\ns_cselect_b32 s36, s78, s36\ns_cselect_b32 s37, s79, s37\ns_cmp_eq_u32 s36, 2048\ns_cselect_b32 s36, 0x100000, s36\ns_cselect_b32 s37, 0x10000000, s37"]
    def adv_w():
        return f"s_add_u32 s39, s39, {SLOT2}\ns_add_u32 s46, s46, 1\ns_cmp_eq_u32 s46, {NS2}\ns_cselect_b32 s41, {-(NS2-1)*SLOT2}, s49\ns_cselect_b32 s46, 0, s46\ns_cselect_b32 s44, {NS2*SLOT2}, 0\ns_sub_u32 s39, s39, s44"
    def reads(st, sub, woffs):
        X = 16 + 24*st; W = 24 + 24*st
        r = []
        xa = "v243" if sub else "v5"
        r.append(f"ds_read_b128 v[{X}:{X+3}], {xa} offset:1792")
        for nb, wo in enumerate(woffs):
            for q in range(2):
                r.append(f"ds_read_b64_tr_b16 v[{W+4*nb+2*q}:{W+4*nb+2*q+1}], v6 offset:{(4*sub+q)*CH2+wo}")
            if nb == 0: r.append(f"ds_read_b128 v[{X+4}:{X+7}], {xa} offset:{CH2+1792}")
        return r
    def mfmas(st, nnb, swap=()):
        X = 16 + 24*st; W = 24 + 24*st
        r = []
        for nb in range(nnb):
            for mb in range(2):
                a = 64 + (nb*2+mb)*16
                wf, xf = vr(W+4*nb, 4), vr(X+4*mb, 4)
                if nb in swap: wf, xf = xf, wf
                r.append(f"{MF} {vr(a,16)}, {wf}, {xf}, {vr(a,16)}")
        return r
    def prologue_dmas(nacc):
        k(f"s_mov_b32 s49, {SLOT2}\ns_mov_b32 s12, s39\ns_add_u32 s13, s39, {NS2*SLOT2}")
        z = [f"v_mov_b32 v{a}, 0" for a in range(64, 64 + nacc)]
        k2_ = Kern("tmp_kernel", 1, 1); rowstats(k2_); st = [x.strip() for x in k2_.lines]
        for s in range(4):
            if s == 2: k("s_waitcnt vmcnt(8)")
            for gi, g in enumerate(dma4()):
                k(g)
                if s < 2:
                    q = 4*s + gi; k("\n".join(z[q*nacc//8:(q+1)*nacc//8]))
                else:
                    q = 4*(s-2) + gi; n = len(st) - 4; k("\n".join(st[q*n//8:(q+1)*n//8]))
        k("""s_lshl_b32 s36, s17, 8
        s_lshr_b32 s44, s38, 6
        s_mul_i32 s37, s36, s44
        s_add_u32 s59, s36, 256
        s_cmp_le_u32 s17, 1
        s_cselect_b32 s78, 2, 1
        s_lshl_b32 s78, s78, 8
        s_mul_i32 s79, s78, s44""")
        k("\n".join(st[-4:]))
    def fifth():
        for g in dma4(): k(g)
    def dots(st, cnb):
        if cnb is None: return []
        W = 24 + 24*st + 4*cnb
        return [f"v_dot2c_f32_bf16 v248, s56, v{W+t}" for t in range(4)]
    def dma4():
        return ["s_mov_b32 m0, s39\ns_mov_b64 exec, s[42:43]\nbuffer_load_dwordx4 v3, s[20:23], s37 offen lds\ns_mov_b64 exec, -1",
                "s_mov_b64 exec, s[42:43]\nbuffer_load_dwordx4 v4, s[20:23], s37 offen offset:896 lds\ns_mov_b64 exec, -1\ns_add_u32 m0, s39, 1792\ns_add_u32 s37, s37, s38",
                f"buffer_load_dwordx4 v244, s[24:27], s36 offen lds\ns_add_u32 s39, s39, {SLOT2}\ns_cmp_eq_u32 s39, s13\ns_cselect_b32 s39, s12, s39",
                "buffer_load_dwordx4 v245, s[24:27], s36 offen offset:1024 lds\ns_add_u32 s36, s36, 64\ns_cmp_eq_u32 s36, s59\ns_cselect_b32 s36, s78, s36\ns_cselect_b32 s37, s79, s37\ns_cmp_eq_u32 s36, 2048\ns_cselect_b32 s36, 0x100000, s36\ns_cselect_b32 s37, 0x10000000, s37"]
    def place(mf, rd, dm, dt):
        n = len(mf); slots = [[] for _ in range(n)]
        per = RPG
        for i, r in enumerate(rd): slots[min(n-1, i // per)].append(r)
        first = max(0, n - len(dm) - DOFF)
        for i, d in enumerate(dm): slots[min(n-1, first + i)].append(d)
        for i, d in enumerate(dt): slots[min(n-1, n - len(dt) + i)].append(d)
        return "\n".join(x for i in range(n) for x in [mf[i]] + slots[i])
    def mainloop(tag, woffs, swap, cnb, early):
        nnb = len(woffs)
        rdadv = f"s_add_u32 s46, s46, 1\ns_cmp_eq_u32 s46, {NS2}\ns_cselect_b32 s41, {-(NS2-1)*SLOT2}, s49\ns_cselect_b32 s46, 0, s46"
        k(f".g1_loop{tag}:")
        k("s_waitcnt lgkmcnt(0)")
        k(place(mfmas(0, nnb, swap), reads(1, 1, woffs) + [rdadv + "\nv_add_u32 v5, s41, v5\nv_add_u32 v6, s41, v6\nv_add_u32 v243, s41, v243"], dma4() if early else [], dots(0, cnb)))
        k("s_sub_u32 s40, s40, 1\ns_waitcnt vmcnt(12) lgkmcnt(0)\ns_barrier")
        k(place(mfmas(1, nnb, swap), reads(0, 0, woffs), [] if early else dma4(), dots(1, cnb)))
        k(f"s_cmp_lg_u32 s40, 0\ns_cbranch_scc1 .g1_loop{tag}")
    def rowstats(k):
        def red(a, t):
            for sh in (8, 4, 2, 1): k(f"v_add_f32_dpp v{a}, v{a}, v{a} row_ror:{sh} row_mask:0xf bank_mask:0xf")
            k(f"v_mov_b32 v{t}, v{a}\nv_permlane16_swap_b32 v{a}, v{t}\nv_add_f32 v{a}, v{a}, v{t}")
            xsum_half(k, a, t)
        for i in range(8): k(f"v_lshlrev_b32 v{200+2*i}, 16, v{192+i}\nv_and_b32 v{201+2*i}, s47, v{192+i}")
        for i in range(4): k(f"v_add_f32 v{216+i}, v{200+4*i}, v{201+4*i}\nv_add_f32 v{220+i}, v{202+4*i}, v{203+4*i}")
        for i in range(4): k(f"v_add_f32 v{216+i}, v{216+i}, v{220+i}")
        k("v_add_f32 v216, v216, v217\nv_add_f32 v218, v218, v219\nv_add_f32 v216, v216, v218")
        red(216, 217)
        k(f"v_mul_f32 v216, {f2u(1/1024)}, v216")
        for i in range(16): k(f"v_sub_f32 v{200+i}, v{200+i}, v216")
        for i in range(4): k(f"v_mul_f32 v{220+i}, v{200+i}, v{200+i}")
        for i in range(4, 16): k(f"v_fmac_f32 v{220+(i&3)}, v{200+i}, v{200+i}")
        k("v_add_f32 v220, v220, v221\nv_add_f32 v222, v222, v223\nv_add_f32 v217, v220, v222")
        red(217, 218)
        k(f"v_mul_f32 v217, {f2u(1/1024)}, v217")
        rnd_bf16(k, 217)
        k(f"v_add_f32 v217, {f2u(1e-5)}, v217\nv_sub_f32 v216, 0, v216"); rnd_bf16(k, 217)
        k(f"""v_sqrt_f32 v217, v217
        s_lshl_b32 s57, s57, 3
        s_add_u32 s57, s57, {STATS}
        v_cvt_pk_bf16_f32 v216, v216, v217
        v_and_b32 v217, s47, v216
        v_rcp_f32 v217, v217
        s_mov_b64 exec, 1
        buffer_store_dwordx2 v[216:217], v254, s[28:31], s57 offen sc1
        s_mov_b64 exec, -1""")
    def loops(tag, woffs, swap, early, pf=None, late=None):
        nnb = len(woffs)
        L = lambda x: f".g1_{x}{tag}"
        for r in reads(0, 0, woffs): k(r)
        if not early: fifth()
        k(f"s_branch .g1_loop{tag}")
        for mw in range(nnb):
            mainloop(f"{tag}d{mw}", woffs, swap, mw, early)
            k(f"s_branch {L('pub')}")
        mainloop(tag, woffs, swap, None, early)
        k(f"""s_add_u32 s58, s58, 1
        s_mov_b32 s40, 4
        s_cmp_eq_u32 s58, 2
        s_cbranch_scc1 .g1_loop{tag}
        s_cmp_eq_u32 s58, 3
        s_cbranch_scc1 {L('p2')}
        s_cmp_eq_u32 s58, 4
        s_cbranch_scc1 {L('p3')}
        s_cmp_eq_u32 s58, 5
        s_cbranch_scc1 {L('p4')}
        s_cmp_eq_u32 s58, 6
        s_cbranch_scc1 {L('done')}
        s_sub_u32 s78, s59, 0
        s_sub_u32 s59, s59, 256
        s_lshr_b32 s44, s38, 6
        s_mul_i32 s79, s78, s44""")
        if 'ph' in EXP: k.stamp(3)
        for mw in range(nnb): k(f"s_cmp_eq_u32 s15, {mw}\ns_cbranch_scc1 .g1_loop{tag}d{mw}")
        k(f"s_branch .g1_loop{tag}\n{L('p2')}:")
        if 'ph' in EXP: k.stamp(4)
        k("s_mov_b32 s40, 12")
        if pf: pf()
        k(f"""s_cmp_eq_u32 s14, 0
        s_cbranch_scc0 .g1_loop{tag}
        v_mov_b32 v248, 1
        s_mov_b64 exec, 1
        buffer_atomic_add v248, v254, s[68:71], 0 offen offset:8 sc1
        s_mov_b64 exec, -1
        s_branch .g1_loop{tag}""")
        k(f"{L('pub')}:")
        xsum_half(k, 248, 249)
        k(f"""v_and_b32 v249, 31, v1
        v_lshlrev_b32 v249, 5, v249
        s_lshl_b32 s44, s15, 10
        s_lshl_b32 s45, s17, 2
        s_add_u32 s44, s44, s45
        s_add_u32 s44, s44, s60
        s_mov_b32 exec_hi, 0
        buffer_store_dword v248, v249, s[28:31], s44 offen sc1
        s_mov_b64 exec, -1
        s_mov_b32 s58, 2
        s_mov_b32 s40, 4
        s_branch .g1_loop{tag}""")
        k(f"{L('p3')}:")
        if 'ph' in EXP: k.stamp(5)
        k(f"""buffer_load_dwordx4 v[216:219], v254, s[68:71], 0 offen
        s_branch .g1_loop{tag}
        {L('p4')}:""")
        if 'ph' in EXP: k.stamp(6)
        k(f"""
        s_mov_b32 s44, {POLL}
        {L('p4l')}:
        v_readfirstlane_b32 s45, v218
        v_readfirstlane_b32 s76, v216
        v_readfirstlane_b32 s77, v217
        s_cmp_eq_u32 s45, 256
        s_cbranch_scc1 {L('p4ok')}
        buffer_load_dwordx4 v[216:219], v254, s[68:71], 0 offen sc1
        s_sub_u32 s44, s44, 1
        s_waitcnt vmcnt(0)
        s_cmp_lg_u32 s44, 0
        s_cbranch_scc1 {L('p4l')}
        {L('p4ok')}:
        v_and_b32 v249, 31, v1
        v_lshlrev_b32 v248, 3, v249
        v_lshlrev_b32 v249, 5, v249
        v_lshl_add_u32 v249, v7, 4, v249
        buffer_load_dwordx2 v[240:241], v248, s[28:31], s61 offen sc1
        buffer_load_dwordx2 v[246:247], v248, s[28:31], s61 offen offset:256 sc1""")
        for nb in range(nnb): k(f"buffer_load_dwordx4 v[{224+4*nb}:{227+4*nb}], v249, s[28:31], s60 offen offset:{1024*nb} sc1")
        if late: late()
        k(f"s_branch .g1_loop{tag}\n{L('done')}:")
    def fixup(nnb, swap, b1, extra=None):
        k("s_waitcnt vmcnt(0) lgkmcnt(0)")
        if extra: extra()
        for i in (18, 19, 22, 23): k(f"v_mov_b32 v{i}, 0")
        k("""v_mov_b32 v56, v241
        v_mov_b32 v57, v241
        v_mov_b32 v58, v247
        v_mov_b32 v59, v247
        v_cmp_gt_u32 vcc, 32, v1
        s_mov_b32 s44, 0x01000100
        v_perm_b32 v16, v240, v240, s44
        v_perm_b32 v20, v246, v246, s44
        v_cndmask_b32 v17, 0, v240, vcc
        v_cndmask_b32 v21, 0, v246, vcc
        v_cndmask_b32 v16, 0, v16, vcc
        v_cndmask_b32 v20, 0, v20, vcc""")
        for nb in range(nnb):
            c = 224 + 4*nb; a = 24 + 4*nb
            k(f"v_add_f32 v{c}, v{c}, v{c+1}\nv_add_f32 v{c+2}, v{c+2}, v{c+3}\nv_mov_b32 v{a+2}, 0\nv_add_f32 v{c}, v{c}, v{c+2}\nv_mov_b32 v{a+3}, 0")
        for nb in range(nnb): k(f"v_mov_b32 v{225+4*nb}, v{224+4*nb}")
        for nb in range(nnb): k(f"v_permlane32_swap_b32 v{224+4*nb}, v{225+4*nb}")
        for nb in range(nnb): k(f"v_add_f32 v{224+4*nb}, v{224+4*nb}, v{225+4*nb}")
        for nb in range(nnb): k(f"v_cvt_pk_bf16_f32 v{225+4*nb}, v{224+4*nb}, v{224+4*nb}")
        for nb in range(nnb): k(f"v_lshlrev_b32 v{225+4*nb}, 16, v{225+4*nb}")
        for nb in range(nnb): k(f"v_sub_f32 v{224+4*nb}, v{224+4*nb}, v{225+4*nb}")
        for nb in range(nnb): k(f"v_cvt_pk_bf16_f32 v{226+4*nb}, v{224+4*nb}, v{224+4*nb}")
        for nb in range(nnb): k(f"v_lshlrev_b32 v{226+4*nb}, 16, v{226+4*nb}")
        for nb in range(nnb): k(f"v_sub_f32 v{224+4*nb}, v{224+4*nb}, v{226+4*nb}")
        for nb in range(nnb):
            k(f"v_cvt_pk_bf16_f32 v{24+4*nb}, v{225+4*nb}, v{226+4*nb}")
            if b1: k(f"v_lshlrev_b32 v{250+nb}, 16, v{250+nb}\nv_cvt_pk_bf16_f32 v{25+4*nb}, v{224+4*nb}, v{250+nb}")
            else: k(f"v_cvt_pk_bf16_f32 v{25+4*nb}, v{224+4*nb}, 0")
        for x in mfmas(0, nnb, swap): k(x)

    srd(k, 20, 8, 9, 1024*7168)
    k(f"""s_mov_b32 s38, {32*7168}
    s_mul_i32 s37, s36, {7168//2}
    s_mov_b32 s42, -1
    s_mov_b32 s43, 0x00ffffff
    s_mul_i32 s44, s18, 448
    v_mul_u32_u24 v3, 7168, v10
    v_lshl_add_u32 v3, v11, 4, v3
    v_add_u32 v3, s44, v3
    v_add_u32 v4, {2*7168-896}, v3
    s_lshl_b32 s45, s16, 8
    s_add_u32 s44, s44, s45
    v_add_u32 v6, s45, v6
    v_and_b32 v12, 31, v1
    v_lshl_add_u32 v12, v12, 1, s44""")
    prologue_dmas(128)
    srd(k, 32, 10, 11, 3584*2)
    k(f"""s_mul_i32 s44, s18, 14
    s_lshl_b32 s45, s16, 3
    s_add_u32 s44, s44, s45
    s_add_u32 s44, s44, 64
    s_lshl_b32 s44, s44, 10
    s_add_u32 s48, s48, s44
    s_add_u32 s50, s48, {A3S}
    s_mov_b32 s51, {f2u(-2.3022081)}
    s_mov_b32 s52, {f2u(-0.10294324)}""")
    k("s_waitcnt vmcnt(13)\ns_barrier")
    k.stamp(1)
    k("s_cmp_eq_u32 s16, 0\ns_cbranch_scc0 .g1_f3")
    pk = lambda r: f"v[{r}:{r+1}]"
    def gelu_tile(nb, mb):
        a = 64 + (nb*2+mb)*16
        T = 192 + 16*((nb*2+mb) & 1)
        P = 224 + 8*((nb*2+mb) & 1)
        for i in range(0, 16, 2): k(f"v_pk_mul_f32 {pk(a+i)}, {pk(a+i)}, {pk(56+2*mb)}")
        for i in range(0, 16, 2): k(f"v_pk_mul_f32 {pk(T+i)}, {pk(a+i)}, {pk(a+i)}")
        for i in range(0, 16, 2): k(f"v_pk_fma_f32 {pk(T+i)}, {pk(T+i)}, s[52:53], v[60:61]")
        for i in range(0, 16, 2): k(f"v_pk_mul_f32 {pk(T+i)}, {pk(T+i)}, {pk(a+i)}")
        for i in range(16): k(f"v_exp_f32 v{T+i}, v{T+i}")
        for i in range(0, 16, 2): k(f"v_pk_add_f32 {pk(T+i)}, {pk(T+i)}, s[54:55]")
        for i in range(16): k(f"v_rcp_f32 v{T+i}, v{T+i}")
        for i in range(0, 16, 2): k(f"v_pk_mul_f32 {pk(T+i)}, {pk(T+i)}, {pk(a+i)}")
        for i in range(8): k(f"v_cvt_pk_bf16_f32 v{P+i}, v{T+2*i}, v{T+2*i+1}")
        for ks in range(2):
            off = (2*nb+ks)*1024
            va = "v2" if off < 4096 else "v14"
            k(f"buffer_store_dwordx4 v[{P+4*ks}:{P+4*ks+3}], {va}, s[28:31], s{48+2*mb} offen offset:{off & 4095} sc1")
    for tag, nnb in (("f4", 4), ("f3", 3)):
        if tag == "f3": k(".g1_f3:")
        woffs = [64*nb for nb in range(nnb)]
        def pf():
            srd(k, 72, 64, 65, 3584*2048)
            k("""s_sub_u32 s44, s2, 128
            s_lshl_b32 s44, s44, 3
            s_add_u32 s44, s44, s14
            s_mul_i32 s45, s44, 7168
            s_lshl_b32 s44, s44, 11
            v_lshlrev_b32 v13, 7, v1
            s_mov_b64 exec, s[42:43]
            buffer_load_dword v220, v13, s[72:75], s45 offen""")
            srd(k, 72, 62, 63, 2*MB)
            k("""s_mov_b64 exec, 0xffff
            buffer_load_dword v221, v13, s[72:75], s44 offen
            s_mov_b64 exec, -1""")
        def late():
            for nb in range(nnb): k(f"buffer_load_ushort v{250+nb}, v12, s[32:35], 0 offen offset:{64*nb}")
        loops(tag, woffs, (), nnb == 3, pf if PF3 else None, late)
        k.stamp(2)
        k("v_mov_b32 v60, s51\nv_mov_b32 v61, s51\nv_add_u32 v14, 4096, v2\ns_mov_b32 s53, s52\ns_mov_b32 s54, 1.0\ns_mov_b32 s55, 1.0")
        fixup(nnb, (), True)
        for nb in range(nnb):
            for mb in range(2): gelu_tile(nb, mb)
        if 'ph' not in EXP: k.stamp(3)
        k.prof_end(1, 28)
        k("s_branch .g2_entry")

    k(".g1_qkv:")
    srd(k, 20, 4, 5, 1024*6144)
    srd(k, 32, 6, 7, 65536)
    k(f"""s_mov_b32 s38, {32*6144}
    s_mul_i32 s37, s36, {6144//2}
    s_mov_b32 s42, 0xf0ffffff
    s_mov_b32 s43, 0x000fffff
    s_lshl_b32 s44, s18, 7
    v_mul_u32_u24 v3, 6144, v10
    v_lshrrev_b32 v12, 3, v11
    v_lshl_add_u32 v3, v12, 11, v3
    v_and_b32 v12, 7, v11
    v_lshl_add_u32 v3, v12, 4, v3
    v_add_u32 v3, s44, v3
    v_add_u32 v4, {2*6144-896}, v3
    s_lshl_b32 s45, s16, 6
    v_add_u32 v6, s45, v6
    s_lshl_b32 s53, s18, 1
    s_add_u32 s53, s53, s16""")
    k(f"""s_cmp_lt_u32 s15, 2
    s_cbranch_scc0 .g1_nophi
    s_lshl_b32 s44, s53, 11
    s_lshl_b32 s45, s15, 10
    s_add_u32 s44, s44, s45
    s_lshl_b32 s54, s16, 11
    s_add_u32 s45, s45, s54
    s_add_u32 m0, s45, {L_WPHI}
    s_nop 0
    buffer_load_dwordx4 v2, s[32:35], s44 offen lds
    .g1_nophi:""")
    prologue_dmas(96)
    k(f"""v_lshl_add_u32 v12, v7, 2, v8
    v_lshl_add_u32 v13, v12, 6, v9
    s_lshl_b32 s44, s16, 11
    s_add_u32 s44, s44, {L_WPHI}
    v_add_u32 v13, s44, v13""")
    k("s_waitcnt vmcnt(13)\ns_barrier")
    k.stamp(1)
    for ks in range(2):
        for q in range(2):
            k(f"ds_read_b64_tr_b16 v[{160+4*ks+2*q}:{161+4*ks+2*q}], v13 offset:{(16*ks+8*q)*64}")
    woffs = [0, 128, 256]
    k("s_cmp_eq_u32 s16, 0\ns_cbranch_scc0 .g1_q1")
    loops("q", woffs, (2,), False)
    k("s_branch .g1_qdone\n.g1_q1:")
    loops("r", woffs, (2,), True)
    k(".g1_qdone:")
    k.stamp(2)
    def rsrows():
        k(f"""s_lshl_b32 s44, s14, 8
        s_add_u32 s44, s44, {L_RS}
        v_and_b32 v253, 31, v1
        v_lshl_add_u32 v253, v253, 2, s44
        ds_write_b32 v253, v241
        ds_write_b32 v253, v247 offset:128
        v_lshl_add_u32 v253, v7, 4, s44
        s_waitcnt lgkmcnt(0)""")
        for mb in range(2):
            for j in range(4): k(f"ds_read_b128 v[{192+16*mb+4*j}:{195+16*mb+4*j}], v253 offset:{128*mb+32*j}")
    fixup(3, (2,), False, rsrows)
    def pack(dst, src):
        for i in range(8): k(f"v_cvt_pk_bf16_f32 v{dst+i}, v{src+2*i}, v{src+2*i+1}")
    k(f"""s_mul_i32 s44, s14, 8704
    v_and_b32 v14, 31, v1
    v_mul_u32_u24 v14, 136, v14
    v_lshl_add_u32 v14, v7, 3, v14
    v_add_u32 v14, s44, v14
    v_mul_u32_u24 v15, 136, v12
    v_add3_u32 v15, v15, v9, s44
    s_mov_b32 s55, {f2u(LOG2E)}""")
    k("s_waitcnt lgkmcnt(0)")
    for t in (2, 3, 0, 1):
        for i in range(0, 16, 2): k(f"v_pk_mul_f32 {pk(64+16*t+i)}, {pk(64+16*t+i)}, {pk(56+2*(t&1))}")
    for i in range(0, 32, 2): k(f"v_pk_mul_f32 {pk(128+i)}, {pk(128+i)}, {pk(192+i)}")
    for mb in range(2): pack(16 + 8*mb, 96 + 16*mb)
    for mb in range(2): pack(48 + 8*mb, 64 + 16*mb)
    for mb in range(2):
        for ks in range(2):
            k(f"{MF} {vr(64+16*mb,16)}, {vr(160+4*ks,4)}, {vr(16+8*mb+4*ks,4)}, {'0' if ks == 0 else vr(64+16*mb,16)}")
    for mb in range(2):
        for ks in range(2):
            k(f"{MF} {vr(96+16*mb,16)}, {vr(160+4*ks,4)}, {vr(48+8*mb+4*ks,4)}, {'0' if ks == 0 else vr(96+16*mb,16)}")
    for mb in range(2): pack(32 + 8*mb, 128 + 16*mb)
    k("s_barrier")
    def softmax(P, D):
        E, N = 128, 144
        for i in range(8): k(f"v_cvt_pk_bf16_f32 v{E+i}, v{P+2*i}, v{P+2*i+1}")
        for i in range(8): k(f"v_lshlrev_b32 v{P+2*i}, 16, v{E+i}\nv_and_b32 v{P+2*i+1}, s47, v{E+i}")
        k(f"v_max3_f32 v168, v{P}, v{P+1}, v{P+2}\nv_min3_f32 v169, v{P}, v{P+1}, v{P+2}")
        k(f"v_max3_f32 v170, v{P+3}, v{P+4}, v{P+5}\nv_min3_f32 v171, v{P+3}, v{P+4}, v{P+5}")
        for i in range(6, 14, 4):
            k(f"v_max3_f32 v168, v168, v{P+i}, v{P+i+1}\nv_min3_f32 v169, v169, v{P+i}, v{P+i+1}")
            k(f"v_max3_f32 v170, v170, v{P+i+2}, v{P+i+3}\nv_min3_f32 v171, v171, v{P+i+2}, v{P+i+3}")
        k(f"v_max3_f32 v168, v168, v{P+14}, v{P+15}\nv_min3_f32 v169, v169, v{P+14}, v{P+15}")
        k("v_max_f32 v168, v168, v170\nv_min_f32 v169, v169, v171")
        k("v_mov_b32 v170, v168\nv_mov_b32 v171, v169\ns_nop 0\nv_permlane32_swap_b32 v168, v170\nv_permlane32_swap_b32 v169, v171")
        k("v_max_f32 v168, v168, v170\nv_min_f32 v169, v169, v171")
        k("v_mul_f32 v168, s55, v168\nv_mul_f32 v169, s55, v169")
        for i in range(16):
            k(f"v_fma_f32 v{E+i}, v{P+i}, s55, -v168\nv_fma_f32 v{N+i}, -v{P+i}, s55, v169")
        for i in range(16): k(f"v_exp_f32 v{E+i}, v{E+i}\nv_exp_f32 v{N+i}, v{N+i}")
        k(f"v_add_f32 v168, v{E}, v{E+1}\nv_add_f32 v169, v{N}, v{N+1}\nv_add_f32 v170, v{E+2}, v{E+3}\nv_add_f32 v171, v{N+2}, v{N+3}")
        for i in range(4, 16, 2):
            k(f"v_add_f32 v168, v168, v{E+i}\nv_add_f32 v169, v169, v{N+i}\nv_add_f32 v170, v170, v{E+i+1}\nv_add_f32 v171, v171, v{N+i+1}")
        k("v_add_f32 v168, v168, v170\nv_add_f32 v169, v169, v171")
        k("v_mov_b32 v170, v168\nv_mov_b32 v171, v169\ns_nop 0\nv_permlane32_swap_b32 v168, v170\nv_permlane32_swap_b32 v169, v171")
        k("v_add_f32 v168, v168, v170\nv_add_f32 v169, v169, v171\nv_rcp_f32 v168, v168\nv_rcp_f32 v169, v169")
        for i in range(16): k(f"v_mul_f32 v{E+i}, v{E+i}, v168\nv_mul_f32 v{N+i}, v{N+i}, v169")
        for i in range(8): k(f"v_cvt_pk_bf16_f32 v{D+i}, v{E+2*i}, v{E+2*i+1}")
        for i in range(8): k(f"v_cvt_pk_bf16_f32 v{D+8+i}, v{N+2*i}, v{N+2*i+1}")
    for mb in range(2):
        D = 208 + 0
        D = 176 + 16*mb
        softmax(64 + 16*mb, D)
        for s in range(2):
            for j in range(4):
                k(f"ds_write_b64 v14, v[{D+8*s+2*j}:{D+8*s+2*j+1}] offset:{32*mb*136 + (32*s+8*j)*2}")
    k("s_waitcnt lgkmcnt(0)")
    n = 0
    for fb in range(2):
        for mb in range(2):
            for ks in range(2):
                f = 128 + ((fb*2+mb)*2+ks)*4
                for q in range(2):
                    k(f"ds_read_b64_tr_b16 v[{f+2*q}:{f+2*q+1}], v15 offset:{(32*mb+16*ks+8*q)*136 + fb*64}")
        if fb == 0: k("v_mov_b32 v168, 0\nv_mov_b32 v169, 0")
    for fb in range(2):
        k(f"s_waitcnt lgkmcnt({8 if fb == 0 else 0})")
        i = 0
        for mb in range(2):
            for ks in range(2):
                f = 128 + ((fb*2+mb)*2+ks)*4
                k(f"{MF} {vr(224+16*fb,16)}, {vr(f,4)}, {vr(32+8*mb+4*ks,4)}, {'0' if i == 0 else vr(224+16*fb,16)}")
                for t in range(4): k(f"v_dot2c_f32_bf16 v{168+fb}, s56, v{f+t}")
                i += 1
    k("v_permlane32_swap_b32 v168, v169\nv_add_f32 v168, v168, v169")
    k(f"""s_lshl_b32 s44, s14, 13
    v_add_u32 v14, s44, v2
    v_add_u32 v14, {L_R}, v14
    s_lshl_b32 s44, s14, 8
    v_lshlrev_b32 v13, 2, v1
    v_add_u32 v15, s44, v13
    v_add_u32 v15, {L_ZL}, v15
    ds_write_b32 v15, v168""")
    for qd in range(8): k(f"ds_write_b128 v14, v[{224+4*qd}:{227+4*qd}] offset:{qd*1024}")
    k(f"""s_lshl_b32 s44, s16, 15
    s_lshl_b32 s45, s15, 11
    s_add_u32 s44, s44, s45
    v_add_u32 v14, s44, v2
    v_add_u32 v14, {L_R}, v14
    s_lshl_b32 s44, s16, 10
    v_add_u32 v15, s44, v13
    v_add_u32 v15, {L_ZL}, v15
    s_lshl_b32 s57, s53, 16
    s_add_u32 s57, s57, s45
    s_add_u32 s57, s57, {KVP}
    s_lshl_b32 s44, s17, 13
    s_add_u32 s58, s57, s44
    s_lshl_b32 s59, s53, 11
    s_add_u32 s59, s59, {ZP}
    s_lshl_b32 s44, s17, 8
    s_add_u32 s60, s59, s44""")
    k("s_waitcnt lgkmcnt(0)\ns_barrier")
    for ww in range(4):
        for qq in range(2): k(f"ds_read_b128 v[{128+8*ww+4*qq}:{131+8*ww+4*qq}], v14 offset:{ww*8192+qq*1024}")
    for ww in range(4): k(f"ds_read_b32 v{168+ww}, v15 offset:{ww*256}")
    k("s_waitcnt lgkmcnt(4)")
    for i in range(8): k(f"v_add_f32 v{128+i}, v{128+i}, v{136+i}\nv_add_f32 v{144+i}, v{144+i}, v{152+i}")
    for i in range(8): k(f"v_add_f32 v{208+i}, v{128+i}, v{144+i}")
    k("buffer_store_dwordx4 v[208:211], v2, s[28:31], s58 offen sc1\nbuffer_store_dwordx4 v[212:215], v2, s[28:31], s58 offen offset:1024 sc1")
    k("""s_waitcnt lgkmcnt(0)
    v_add_f32 v168, v168, v169
    v_add_f32 v170, v170, v171
    v_add_f32 v216, v168, v170
    s_cmp_eq_u32 s15, 0
    s_cbranch_scc0 .g1_noz
    buffer_store_dword v216, v13, s[28:31], s60 offen sc1
    .g1_noz:""")
    if 'ph' not in EXP: k.stamp(3)
    softmax(96, 176)
    k("s_waitcnt vmcnt(0)\ns_barrier")
    if 'ph' not in EXP: k.stamp(4)
    k(f"""s_lshl_b32 s61, s18, 7
    s_add_u32 s61, s61, {FLAGS + FL_K2}
    s_cmp_eq_u32 s14, 0
    s_cbranch_scc0 .g1_nofl
    s_lshl_b32 s44, s17, 3
    v_mov_b32 v14, s44
    v_mov_b32 v220, s76
    v_mov_b32 v221, s77
    s_mov_b64 exec, 1
    buffer_store_dwordx2 v[220:221], v14, s[28:31], s61 offen sc1
    s_mov_b64 exec, -1
    .g1_nofl:""")
    softmax(112, 192)
    if 'ph' not in EXP: k.stamp(5)
    k(f"""s_cmp_eq_u32 s14, 0
    s_cbranch_scc0 .g1_polled
    s_mov_b32 s44, {POLL}
    v_lshlrev_b32 v14, 3, v1
    s_mov_b64 exec, 0xff
    .g1_poll:
    buffer_load_dwordx2 v[220:221], v14, s[28:31], s61 offen sc1
    s_waitcnt vmcnt(0)
    v_cmp_ne_u64 vcc, s[76:77], v[220:221]
    s_sub_u32 s44, s44, 1
    s_cbranch_vccz .g1_pdone
    s_sleep 1
    s_cmp_lg_u32 s44, 0
    s_cbranch_scc1 .g1_poll
    .g1_pdone:
    s_mov_b64 exec, -1
    .g1_polled:
    s_barrier""")
    if 'ph' not in EXP: k.stamp(6)
    for mm in range(8):
        k(f"buffer_load_dwordx4 v[{64+8*mm}:{67+8*mm}], v2, s[28:31], s57 offen sc1\nbuffer_load_dwordx4 v[{68+8*mm}:{71+8*mm}], v2, s[28:31], s57 offen offset:1024 sc1")
        if mm < 7: k("s_add_u32 s57, s57, 8192")
    k("s_cmp_eq_u32 s15, 0\ns_cbranch_scc0 .g1_noz2")
    for mm in range(8): k(f"buffer_load_dword v{128+mm}, v13, s[28:31], s59 offen offset:{256*mm} sc1")
    k(f"""s_lshl_b32 s44, s16, 7
    v_lshlrev_b32 v14, 1, v1
    v_add_u32 v14, s44, v14
    v_add_u32 v14, {L_ZB}, v14
    s_waitcnt vmcnt(0)
    v_add_f32 v128, v128, v129
    v_add_f32 v130, v130, v131
    v_add_f32 v132, v132, v133
    v_add_f32 v134, v134, v135
    v_add_f32 v128, v128, v130
    v_add_f32 v132, v132, v134
    v_add_f32 v128, v128, v132
    v_cvt_pk_bf16_f32 v128, v128, v128
    ds_write_b16 v14, v128
    .g1_noz2:""")
    k(f"""s_lshl_b32 s44, s16, 12
    v_add_u32 v14, s44, v2
    v_add_u32 v14, {L_KF}, v14
    s_lshl_b32 s45, s15, 10
    v_add_u32 v15, s45, v14
    s_lshl_b32 s44, s16, 7
    v_lshlrev_b32 v12, 3, v7
    v_add_u32 v12, s44, v12
    v_add_u32 v12, {L_ZB}, v12
    s_waitcnt vmcnt(0)""")
    for st in (32, 16, 8):
        for i in range(st): k(f"v_add_f32 v{64+i}, v{64+i}, v{64+st+i}")
    for i in range(4): k(f"v_cvt_pk_bf16_f32 v{64+i}, v{64+2*i}, v{65+2*i}")
    k("ds_write_b128 v15, v[64:67]\ns_waitcnt lgkmcnt(0)\ns_barrier")
    for f in range(4): k(f"ds_read_b128 v[{64+4*f}:{67+4*f}], v14 offset:{1024*f}")
    for f in range(4):
        for q in range(2): k(f"ds_read_b64 v[{80+4*f+2*q}:{81+4*f+2*q}], v12 offset:{(16*f+8*q)*2}")
    k(f"""s_lshl_b32 s44, s53, 11
    s_add_u32 s48, s48, s44
    s_add_u32 s50, s48, {A3S}
    s_waitcnt lgkmcnt(0)""")
    for mb in range(2):
        for f in range(4):
            k(f"{MF} {vr(128+16*mb,16)}, {vr(80+4*f,4)}, {vr(176+16*mb+4*f,4)}, {'0' if f == 0 else vr(128+16*mb,16)}")
        for f in range(4):
            k(f"{MF} {vr(96+16*mb,16)}, {vr(64+4*f,4)}, {vr(176+16*mb+4*f,4)}, {'0' if f == 0 else vr(96+16*mb,16)}")
    for mb in range(2):
        d = 128 + 16*mb; o = 96 + 16*mb; P = 16 + 8*mb
        rnd_bf16(k, d); k(f"v_add_f32 v{d}, {f2u(1e-6)}, v{d}"); rnd_bf16(k, d); k(f"v_rcp_f32 v{d}, v{d}")
        pack(P, o)
        for i in range(8): k(f"v_lshlrev_b32 v{o+2*i}, 16, v{P+i}\nv_and_b32 v{o+2*i+1}, s47, v{P+i}")
        for i in range(16): k(f"v_mul_f32 v{o+i}, v{o+i}, v{d}")
        pack(P, o)
        for ks in range(2):
            k(f"buffer_store_dwordx4 v[{P+4*ks}:{P+4*ks+3}], v2, s[28:31], s{48+2*mb} offen offset:{1024*ks} sc1")
    k.prof_end(1, 28)
    from gen3 import k3
    k3(k)
    k(".g1_end:")
    return k

def build(path, which=None, verbose=False):
    which = which or (k2,)
    ks = []
    for f in which:
        k = f()
        k.lines, n = haz.fix(k.name, k.lines, verbose)
        assert haz.check(k.name, k.lines + ["s_endpgm"]) == 0
        print(k.name, "lines", len(k.lines), "nop states", n)
        ks.append(k)
    open(path, "w").write(module(ks))
if __name__ == "__main__":
    if "-p" in sys.argv:
        Kern.prof = True
        build("prof%s.s" % EXP); sys.exit(0)
    build("recurrent_scan__linear_kernel_hedgehog__dense_activation_gelu__prompt.s", verbose="-v" in sys.argv)
```

```python
from asmlib import *
import gen as G
SLOT, CH, NS = 24576, 6144, 6
def k3(k):
    MF, f2u, srd = G.MF, G.f2u, G.srd
    A3, A3S, EX, FLAGS, MB, WSZ = G.A3, G.A3S, G.F1, G.FLAGS, G.MB, G.WSZ
    k(f""".g2_entry:
    s_mov_b64 exec, -1
    s_lshl_b32 s70, s19, 3
    s_add_u32 s70, s70, s17
    s_lshl_b32 s70, s70, 7
    s_lshl_b32 s71, s18, 3
    s_add_u32 s70, s70, s71
    s_add_u32 s70, s70, {FLAGS + G.FL_G}""")
    k("""s_load_dwordx2 s[4:5], s[0:1], 0
    s_load_dwordx2 s[6:7], s[0:1], 24
    s_load_dwordx4 s[8:11], s[0:1], 56
    s_load_dwordx2 s[12:13], s[0:1], 72
    s_load_dwordx2 s[14:15], s[0:1], 88""")
    for i in range(8): k.stamp(i)
    k("""v_lshrrev_b32 v2, 6, v0
    v_and_b32 v1, 63, v0
    s_and_b32 s17, s2, 3
    s_bfe_u32 s18, s2, 0x10002
    v_readfirstlane_b32 s16, v2
    s_lshl_b32 s18, s18, 2
    s_bfe_u32 s54, s2, 0x20003
    s_add_u32 s18, s18, s54
    s_lshr_b32 s19, s2, 5
    s_lshl_b32 s20, s18, 3
    s_add_u32 s20, s20, s19
    v_lshlrev_b32 v2, 4, v1
    s_sub_u32 s54, s17, 1
    s_mul_i32 s54, s54, 37
    s_cmp_eq_u32 s17, 3
    s_cselect_b32 s21, 38, 37
    s_lshl_b32 s49, s54, 16
    s_lshl_b32 s48, s54, 11
    s_add_u32 s48, s48, 65536
    s_cmp_eq_u32 s17, 0
    s_cselect_b32 s21, 32, s21
    s_cselect_b32 s48, 0, s48
    s_cselect_b32 s49, 0, s49""")
    k(f"""s_mul_i32 s54, s18, {8*A3S}
    s_add_u32 s54, s54, {A3 - 2048}
    s_waitcnt lgkmcnt(0)""")
    srd(k, 28, 14, 15, 8*A3S + 2048, "s54")
    srd(k, 24, 8, 9, 3584*2048)
    k("s_cmp_eq_u32 s17, 0\ns_cbranch_scc0 .g2_w2")
    srd(k, 24, 6, 7, 2*MB)
    k(".g2_w2:")
    srd(k, 32, 14, 15, WSZ)
    srd(k, 36, 4, 5, 4*MB)
    srd(k, 40, 12, 13, 4*MB)
    srd(k, 44, 10, 11, 2048)
    k("s_cmp_lt_u32 s16, 4\ns_cbranch_scc1 .g2_comp")
    k(f"""s_sub_u32 s22, s16, 4
    v_lshrrev_b32 v11, 4, v1
    v_bfe_u32 v12, v1, 2, 2
    v_xor_b32 v12, v12, v11
    v_lshlrev_b32 v3, 11, v11
    v_lshl_add_u32 v3, v12, 6, v3
    v_and_b32 v12, 3, v1
    v_lshl_add_u32 v3, v12, 4, v3
    s_lshl_b32 s54, s22, 14
    s_lshl_b32 s55, s19, 8
    s_add_u32 s54, s54, s55
    v_add_u32 v3, s54, v3
    v_add_u32 v4, 7168, v3
    s_and_b32 s54, s22, 1
    s_lshl_b32 s54, s54, 1
    s_xor_b32 s54, s54, s17
    s_lshr_b32 s55, s22, 1
    s_lshl_b32 s55, s55, 2
    s_add_u32 s54, s54, s55
    s_xor_b32 s55, s54, 1
    s_mul_i32 s54, s54, {A3S}
    s_mul_i32 s55, s55, {A3S}
    s_add_u32 s55, s55, 2048
    v_add_u32 v5, s54, v2
    v_add_u32 v6, s55, v2
    s_mul_i32 s50, s22, {CH}
    s_add_u32 s51, s50, {SLOT*NS}""")
    def issue():
        k(f"""s_mov_b32 m0, s50
        s_add_u32 s52, s50, 4096
        buffer_load_dwordx4 v3, s[24:27], s49 offen lds
        buffer_load_dwordx4 v4, s[24:27], s49 offen offset:1024 lds
        buffer_load_dwordx4 v5, s[28:31], s48 offen offset:2048 lds
        buffer_load_dwordx4 v5, s[28:31], s48 offen offset:3072 lds
        s_mov_b32 m0, s52
        s_add_u32 s50, s50, {SLOT}
        buffer_load_dwordx4 v6, s[28:31], s48 offen lds
        buffer_load_dwordx4 v6, s[28:31], s48 offen offset:1024 lds
        s_add_u32 s48, s48, 2048
        s_add_u32 s49, s49, 65536
        s_cmp_eq_u32 s50, s51
        s_cselect_b32 s52, {SLOT*NS}, 0
        s_sub_u32 s50, s50, s52""")
    k(f"""s_cmp_eq_u32 s17, 0
    s_cselect_b32 s54, 0, 8
    s_add_u32 s54, s54, s18
    s_lshl_b32 s54, s54, 7
    s_add_u32 s54, s54, {FLAGS + G.FL_G}
    s_mul_i32 s56, s17, 5
    s_lshl_b32 s56, 0x3f, s56
    s_lshr_b32 s56, s56, 5
    s_cmp_eq_u32 s17, 0
    s_cselect_b32 s56, 0xffff, s56
    s_mov_b32 s57, 0
    v_lshlrev_b32 v12, 3, v1
    s_mov_b32 s59, {G.POLL}
    s_waitcnt vmcnt(0)
    s_barrier""")
    k.stamp(3)
    for s in range(NS):
        k(f"""s_add_u32 m0, s50, {s*SLOT}
        s_nop 0
        buffer_load_dwordx4 v3, s[24:27], s49 offen lds
        buffer_load_dwordx4 v4, s[24:27], s49 offen offset:1024 lds
        s_add_u32 s49, s49, 65536""")
    k(f"""s_mov_b64 exec, s[56:57]
    .g2_rpoll:
    buffer_load_dwordx2 v[10:11], v12, s[32:35], s54 offen sc1
    s_waitcnt vmcnt(0)
    v_cmp_ne_u64 vcc, s[76:77], v[10:11]
    s_sub_u32 s59, s59, 1
    s_cbranch_vccz .g2_rdone
    s_cmp_lg_u32 s59, 0
    s_cbranch_scc1 .g2_rpoll
    .g2_rdone:
    s_mov_b64 exec, -1""")
    k.stamp(4)
    for s in range(NS):
        k(f"""s_add_u32 m0, s50, {s*SLOT}
        s_add_u32 s52, s50, {s*SLOT + 4096}
        buffer_load_dwordx4 v5, s[28:31], s48 offen offset:2048 lds
        buffer_load_dwordx4 v5, s[28:31], s48 offen offset:3072 lds
        s_mov_b32 m0, s52
        s_nop 0
        buffer_load_dwordx4 v6, s[28:31], s48 offen lds
        buffer_load_dwordx4 v6, s[28:31], s48 offen offset:1024 lds
        s_add_u32 s48, s48, 2048""")
    k(f"s_sub_u32 s21, s21, {2*NS-2}\ns_waitcnt vmcnt({4*(NS-1)})\ns_barrier")
    k.stamp(1)
    for i in range(NS-2):
        k(f"s_waitcnt vmcnt({4*(NS-2) + 2*i})\ns_barrier")
        issue()
    k(".g2_lloop:")
    k(f"s_waitcnt vmcnt({6*(NS-2)})\ns_barrier")
    issue()
    k("s_sub_u32 s21, s21, 1\ns_cmp_lg_u32 s21, 0\ns_cbranch_scc1 .g2_lloop")
    k.stamp(2)
    for i in range(NS-2, -1, -1): k(f"s_waitcnt vmcnt({6*i})\ns_barrier")
    k("s_barrier")
    k.prof_end(2, 32)
    k("s_endpgm")
    k(".g2_comp:")
    k(f"""s_and_b32 s22, s16, 1
    s_lshr_b32 s23, s16, 1
    v_lshrrev_b32 v8, 5, v1
    v_bfe_u32 v9, v1, 2, 2
    v_bfe_u32 v10, v1, 4, 1
    v_lshlrev_b32 v10, 5, v10
    v_and_b32 v11, 3, v1
    v_lshl_add_u32 v10, v11, 3, v10
    s_mul_i32 s54, s22, {2*CH}
    v_add_u32 v5, s54, v2
    v_lshl_add_u32 v11, v8, 2, v9
    v_lshl_add_u32 v10, v11, 8, v10
    s_lshl_b32 s54, s23, 1
    v_xor_b32 v11, s54, v9
    v_lshl_add_u32 v6, v11, 6, v10
    v_xor_b32 v11, 1, v11
    v_lshl_add_u32 v7, v11, 6, v10
    s_lshl_b32 s54, s19, 8
    s_lshl_b32 s55, s23, 7
    s_add_u32 s54, s54, s55
    v_lshlrev_b32 v12, 3, v8
    v_add_u32 v12, s54, v12
    s_lshl_b32 s55, s18, 19
    s_lshl_b32 s56, s22, 18
    s_add_u32 s64, s55, s56
    s_lshl_b32 s56, s17, 16
    s_add_u32 s64, s64, s56
    v_and_b32 v11, 31, v1
    v_lshl_add_u32 v13, v11, 11, v12
    v_lshl_add_u32 v14, v8, 3, v13""")
    k("""v_mov_b32 v16, s76
    v_mov_b32 v17, s77
    v_mov_b32 v18, 0
    s_waitcnt vmcnt(0)
    s_barrier
    s_cmp_eq_u32 s16, 0
    s_cbranch_scc0 .g2_nofl
    s_mov_b64 exec, 1
    buffer_store_dwordx2 v[16:17], v18, s[32:35], s70 offen sc1
    s_mov_b64 exec, -1
    .g2_nofl:""")
    for nb in range(2):
        for j in range(4):
            t = 192 + (nb*4+j)*2
            k(f"buffer_load_dwordx2 v[{t}:{t+1}], v13, s[36:39], s64 offen offset:{(32*nb+8*j)*2}")
    for nb in range(2):
        for j in range(4):
            t = 208 + (nb*4+j)*2
            k(f"buffer_load_dwordx2 v[{t}:{t+1}], v12, s[44:47], 0 offen offset:{(32*nb+8*j)*2}")
    for a in range(64, 192): k(f"v_mov_b32 v{a}, 0")
    k(f"""s_lshl_b32 s54, s20, 18
    s_lshl_b32 s55, s16, 14
    s_add_u32 s54, s54, s55
    s_add_u32 s54, s54, {EX - 4096}
    s_lshl_b32 s55, s17, 16
    s_add_u32 s60, s54, s55
    s_cmp_eq_u32 s17, 0
    s_cselect_b32 s57, 3, s17
    s_cmp_eq_u32 s57, 3
    s_cselect_b32 s55, 0, s57
    s_add_u32 s55, s55, 1
    s_cmp_eq_u32 s55, 3
    s_cselect_b32 s56, 0, s55
    s_add_u32 s56, s56, 1""")
    for i in range(3):
        k(f"""s_xor_b32 s58, s{55+i}, s17
        s_lshl_b32 s58, s58, 16
        s_lshl_b32 s59, s{55+i}, 12
        s_add_u32 s58, s58, s59
        s_add_u32 s{61+i}, s54, s58""")
    k(f"""s_lshl_b32 s54, s20, 8
    s_lshl_b32 s55, s16, 6
    s_add_u32 s65, s54, s55
    s_add_u32 s65, s65, {FLAGS + G.FL_F1}
    s_lshl_b32 s54, 1, s17
    s_xor_b32 s66, s54, 15
    s_mov_b32 s67, 0
    s_mov_b32 s68, s54
    s_mov_b32 s69, 0
    v_lshlrev_b32 v15, 3, v1
    s_mov_b32 s58, 0xffff0000
    s_mov_b32 s50, 0
    s_mov_b32 s52, {SLOT}""")
    def reads(st, sub):
        X = 16 + 24*st; W = 32 + 24*st
        xs = [f"ds_read_b128 v[{X+4*mb}:{X+4*mb+3}], v5 offset:{(mb>>1)*CH + 2048 + (mb&1)*2048 + sub*1024}" for mb in range(4)]
        ws = [f"ds_read_b64_tr_b16 v[{W+4*nb+2*q}:{W+4*nb+2*q+1}], v{6+nb} offset:{(2*sub+q)*CH}" for nb in range(2) for q in range(2)]
        return [ws[0] + "\n" + ws[1] + "\n" + xs[0], xs[1] + "\n" + xs[2], xs[3] + "\n" + ws[2] + "\n" + ws[3]]
    def mfmas(st):
        X = 16 + 24*st; W = 32 + 24*st
        return [f"{MF} {vr(64+(nb*4+mb)*16,16)}, {vr(W+4*nb,4)}, {vr(X+4*mb,4)}, {vr(64+(nb*4+mb)*16,16)}" for nb in range(2) for mb in range(4)]
    k("s_barrier")
    k.stamp(1)
    for r in reads(0, 0): k(r)
    k(".g2_loop:")
    k("s_waitcnt lgkmcnt(0)")
    mf = mfmas(0); rd = reads(1, 1)
    for i in range(8):
        k(mf[i])
        if i < 3: k(rd[i])
        if i == 3: k(f"s_add_u32 s50, s50, 1\ns_cmp_eq_u32 s50, {NS}\ns_cselect_b32 s51, {-(NS-1)*SLOT}, s52\ns_cselect_b32 s50, 0, s50")
        if i == 5: k("v_add_u32 v5, s51, v5\nv_add_u32 v6, s51, v6\nv_add_u32 v7, s51, v7")
    k("s_waitcnt lgkmcnt(0)\ns_barrier")
    mf = mfmas(1); rd = reads(0, 0)
    for i in range(8):
        k(mf[i])
        if i < 3: k(rd[i])
        if i == 4: k("s_sub_u32 s21, s21, 1\ns_cmp_lg_u32 s21, 0")
    k("s_cbranch_scc1 .g2_loop")
    k.stamp(2)
    k("s_waitcnt lgkmcnt(0)")
    for mb in range(1, 4):
        k("s_add_u32 s60, s60, 4096")
        for nb in range(2):
            a = 64 + (nb*4+mb)*16; P = 16 + ((mb-1)*2+nb)*8
            for i in range(8): k(f"v_cvt_pk_bf16_f32 v{P+i}, v{a+2*i}, v{a+2*i+1}")
            for g in range(2): k(f"buffer_store_dwordx4 v[{P+4*g}:{P+4*g+3}], v2, s[32:35], s60 offen offset:{nb*2048+g*1024} sc1")
    k("s_waitcnt vmcnt(12)")
    for i in range(16): k(f"v_lshlrev_b32 v{144+2*i}, 16, v{192+i}\nv_and_b32 v{145+2*i}, s58, v{192+i}")
    for i in range(16): k(f"v_lshlrev_b32 v{224+2*i}, 16, v{208+i}\nv_and_b32 v{225+2*i}, s58, v{208+i}")
    own = [64 + i for i in range(16)] + [128 + i for i in range(16)]
    oth = [224 + i for i in range(32)]
    pk = lambda r: f"v[{r}:{r+1}]"
    k("s_cmp_eq_u32 s17, 0\ns_cbranch_scc1 .g2_nob")
    for i in range(0, 32, 2): k(f"v_pk_add_f32 {pk(own[i])}, {pk(own[i])}, {pk(oth[i])}")
    k(".g2_nob:")
    k(f"""v_mov_b32 v8, s76
    v_mov_b32 v9, s77
    s_mov_b32 s54, {f2u(-G.LOG2E)}
    s_mov_b32 s55, s54
    s_mov_b32 s56, 1.0
    s_mov_b32 s57, 1.0
    s_mov_b32 s59, {G.POLL}
    s_waitcnt vmcnt(0)""")
    k.stamp(3)
    k(f"""s_mov_b64 exec, s[68:69]
    buffer_store_dwordx2 v[8:9], v15, s[32:35], s65 offen sc1
    s_mov_b64 exec, s[66:67]
    .g2_poll:
    buffer_load_dwordx2 v[10:11], v15, s[32:35], s65 offen sc1
    s_waitcnt vmcnt(0)
    v_cmp_ne_u64 vcc, s[76:77], v[10:11]
    s_sub_u32 s59, s59, 1
    s_cbranch_vccz .g2_pdone
    s_cmp_lg_u32 s59, 0
    s_cbranch_scc1 .g2_poll
    .g2_pdone:
    s_mov_b64 exec, -1""")
    k.stamp(4)
    for nb in range(2):
        for i in range(3):
            R = 80 + (nb*3+i)*8
            for g in range(2): k(f"buffer_load_dwordx4 v[{R+4*g}:{R+4*g+3}], v2, s[32:35], s{61+i} offen offset:{nb*2048+g*1024} sc1")
    def epi(F, S, kq0):
        for nb in range(2):
            f = F[16*nb]; s = S[16*nb]; T = 16; X = 144 + 16*nb; P = 48 + 8*nb
            for i in range(3):
                R = 80 + (nb*3+i)*8
                k(f"s_waitcnt vmcnt({10 - 2*(nb*3+i) + 2*nb})")
                D = s if (i == 2 and not kq0) else T + 16*(i & 1)
                for j in range(8): k(f"v_lshlrev_b32 v{D+2*j}, 16, v{R+j}\nv_and_b32 v{D+2*j+1}, s58, v{R+j}")
                if D != s:
                    for j in range(8): k(f"v_pk_add_f32 {pk(f+2*j)}, {pk(f+2*j)}, {pk(D+2*j)}")
            if nb == 1: k.stamp(5)
            for j in range(8): k(f"v_pk_mul_f32 {pk(T+2*j)}, {pk(f+2*j)}, s[54:55]")
            for j in range(16): k(f"v_exp_f32 v{T+j}, v{T+j}")
            for j in range(8): k(f"v_pk_mul_f32 {pk(f+2*j)}, {pk(f+2*j)}, {pk(s+2*j)}")
            for j in range(8): k(f"v_pk_add_f32 {pk(T+2*j)}, {pk(T+2*j)}, s[56:57]")
            for j in range(16): k(f"v_rcp_f32 v{T+j}, v{T+j}")
            for j in range(8): k(f"v_pk_fma_f32 {pk(X+2*j)}, {pk(f+2*j)}, {pk(T+2*j)}, {pk(X+2*j)}")
            for j in range(8): k(f"v_cvt_pk_bf16_f32 v{P+j}, v{X+2*j}, v{X+2*j+1}")
            for g in range(2):
                for u in range(2): k(f"v_permlane32_swap_b32 v{P+4*g+u}, v{P+4*g+2+u}")
            for g in range(2):
                k(f"buffer_store_dwordx4 v[{P+4*g}:{P+4*g+3}], v14, s[40:43], s64 offen offset:{(32*nb+16*g)*2}")
        k.prof_end(2, 32)
    k("s_cmp_eq_u32 s17, 0\ns_cbranch_scc1 .g2_epi0")
    epi(own, oth, False)
    k("s_endpgm")
    k(".g2_epi0:")
    epi(oth, own, True)
    return k
```

```python
import sys, struct
sys.path.insert(0, "dev")
from asmlib import *
import haz
MB = 1 << 20
XN, A3, KVP, ZP, FLAGS, F1, GG = 1*MB, 5*MB, 24*MB, 26*MB, 27*MB, 32*MB, 40*MB
A3S = 288 * 1024
FL_K2, FL_F1, FL_G = 0, 4096, 20480
STATS, CSUM = 28*MB, 28*MB + 65536
WSZ = 0x10000000
def f2u(x): return "0x%08x" % struct.unpack("<I", struct.pack("<f", x))[0]
LOG2E = 1.4426950408889634
POLL = 1 << 14
PF3 = True
import os
EXP = os.environ.get('EXP','')

def srd(k, d, lo, hi, nrec, off=None):
    if off is None:
        k(f"s_mov_b32 s{d}, s{lo}\ns_mov_b32 s{d+1}, s{hi}")
    else:
        k(f"s_add_u32 s{d}, s{lo}, {off}\ns_addc_u32 s{d+1}, s{hi}, 0")
    k(f"s_mov_b32 s{d+2}, {nrec}\ns_mov_b32 s{d+3}, 0x20000")

def xsum_half(k, a, t, op="v_add_f32"):
    k(f"v_mov_b32 v{t}, v{a}\nv_permlane32_swap_b32 v{a}, v{t}\n{op} v{a}, v{a}, v{t}")

def rnd_bf16(k, a):
    k(f"v_cvt_pk_bf16_f32 v{a}, v{a}, v{a}\nv_lshlrev_b32 v{a}, 16, v{a}")

def k1():
    k = Kern("ln_kernel", 256, 512, lds=512, nvgpr=64, nsgpr=32)
    k("s_load_dwordx2 s[4:5], s[0:1], 0\ns_load_dwordx2 s[6:7], s[0:1], 88")
    k("s_cmp_ge_u32 s2, 256\ns_cbranch_scc1 .ln_end")
    for i in range(8): k.stamp(i)
    k("""v_and_b32 v1, 7, v0
    v_lshrrev_b32 v2, 6, v0
    v_bfe_u32 v3, v0, 3, 3
    v_lshl_add_u32 v3, v2, 4, v3
    s_lshl_b32 s3, s2, 14
    v_lshlrev_b32 v4, 11, v1
    v_lshl_add_u32 v4, v3, 4, v4
    v_add_u32 v4, s3, v4""")
    k("s_waitcnt lgkmcnt(0)")
    srd(k, 8, 4, 5, 4*MB)
    srd(k, 12, 6, 7, WSZ)
    k("buffer_load_dwordx4 v[8:11], v4, s[8:11], 0 offen\nbuffer_load_dwordx4 v[12:15], v4, s[8:11], 0 offen offset:128")
    k(f"""s_lshr_b32 s16, s2, 2
    s_lshl_b32 s16, s16, 16
    s_and_b32 s17, s2, 3
    s_lshl_b32 s17, s17, 7
    s_add_u32 s16, s16, s17
    s_add_u32 s16, s16, {XN}
    v_lshrrev_b32 v5, 1, v3
    v_lshlrev_b32 v5, 10, v5
    v_and_b32 v6, 1, v3
    v_lshl_add_u32 v5, v6, 9, v5
    v_lshl_add_u32 v5, v1, 4, v5
    v_add_u32 v5, s16, v5
    s_mov_b32 s18, 4096
    v_lshlrev_b32 v6, 6, v1
    v_lshl_add_u32 v7, v2, 3, v6""")
    k(f"""v_cmp_gt_u32 vcc, 64, v0
    s_lshl_b32 s19, s2, 8
    s_add_u32 s19, s19, {FLAGS}
    v_lshlrev_b32 v40, 2, v0
    v_mov_b32 v41, 0
    s_and_saveexec_b64 s[20:21], vcc
    s_cbranch_execz .ln_nz
    buffer_store_dword v41, v40, s[12:15], s19 offen sc1
    .ln_nz:
    s_mov_b64 exec, s[20:21]""")
    k("s_mov_b32 s22, 0xffff0000")
    k("s_waitcnt vmcnt(0)")
    for i in range(8):
        k(f"v_lshlrev_b32 v{16+2*i}, 16, v{8+i}\nv_and_b32 v{17+2*i}, s22, v{8+i}")
    def red3(a, t):
        k(f"v_add_f32_dpp v{a}, v{a}, v{a} row_ror:8 row_mask:0xf bank_mask:0xf")
        k(f"v_mov_b32 v{t}, v{a}\nv_permlane16_swap_b32 v{a}, v{t}\nv_add_f32 v{a}, v{a}, v{t}")
        xsum_half(k, a, t)
    for i in range(4):
        k(f"v_add_f32 v{32+i}, v{16+4*i}, v{17+4*i}\nv_add_f32 v{36+i}, v{18+4*i}, v{19+4*i}")
    for i in range(4): k(f"v_add_f32 v{32+i}, v{32+i}, v{36+i}")
    k("v_add_f32 v32, v32, v33\nv_add_f32 v34, v34, v35\nv_add_f32 v32, v32, v34")
    red3(32, 33)
    k(f"v_mul_f32 v32, {f2u(1/128)}, v32")
    for i in range(16): k(f"v_sub_f32 v{40+i}, v{16+i}, v32")
    for i in range(4): k(f"v_mul_f32 v{36+i}, v{40+i}, v{40+i}")
    for i in range(4, 16): k(f"v_fmac_f32 v{36+(i&3)}, v{40+i}, v{40+i}")
    k("v_add_f32 v36, v36, v37\nv_add_f32 v38, v38, v39\nv_add_f32 v33, v36, v38")
    red3(33, 34)
    k("ds_write_b64 v7, v[32:33]\ns_waitcnt lgkmcnt(0)\ns_barrier")
    for i in range(4): k(f"ds_read_b128 v[{40+4*i}:{43+4*i}], v6 offset:{16*i}")
    k("s_waitcnt lgkmcnt(0)")
    k("""v_add_f32 v32, v40, v42
    v_add_f32 v33, v44, v46
    v_add_f32 v34, v48, v50
    v_add_f32 v35, v52, v54
    v_add_f32 v36, v41, v43
    v_add_f32 v37, v45, v47
    v_add_f32 v38, v49, v51
    v_add_f32 v39, v53, v55
    v_add_f32 v32, v32, v33
    v_add_f32 v34, v34, v35
    v_add_f32 v36, v36, v37
    v_add_f32 v38, v38, v39
    v_add_f32 v32, v32, v34
    v_add_f32 v36, v36, v38
    v_mul_f32 v32, 0x3e000000, v32""")
    for i in range(8): k(f"v_sub_f32 v{40+2*i}, v{40+2*i}, v32")
    k("v_mul_f32 v33, v40, v40\nv_mul_f32 v34, v42, v42")
    for i in range(2, 8): k(f"v_fmac_f32 v{33+(i&1)}, v{40+2*i}, v{40+2*i}")
    k(f"""v_add_f32 v33, v33, v34
    v_fmac_f32 v36, {f2u(128.0)}, v33
    v_mul_f32 v36, {f2u(1/1024)}, v36""")
    rnd_bf16(k, 32); rnd_bf16(k, 36)
    k(f"v_add_f32 v36, {f2u(1e-5)}, v36"); rnd_bf16(k, 36)
    k("v_sqrt_f32 v36, v36"); rnd_bf16(k, 36)
    k("v_rcp_f32 v36, v36")
    for i in range(16): k(f"v_sub_f32 v{16+i}, v{16+i}, v32")
    for i in range(8): k(f"v_cvt_pk_bf16_f32 v{8+i}, v{16+2*i}, v{17+2*i}")
    for i in range(8): k(f"v_lshlrev_b32 v{16+2*i}, 16, v{8+i}\nv_and_b32 v{17+2*i}, s22, v{8+i}")
    for i in range(16): k(f"v_mul_f32 v{16+i}, v{16+i}, v36")
    for i in range(8): k(f"v_cvt_pk_bf16_f32 v{8+i}, v{16+2*i}, v{17+2*i}")
    k("buffer_store_dwordx4 v[8:11], v5, s[12:15], 0 offen\nbuffer_store_dwordx4 v[12:15], v5, s[12:15], s18 offen")
    k.prof_end(0, 12)
    k(".ln_end:")
    return k

def interleave(mf, others, first=0):
    out = []; n = len(mf); m = len(others); o = 0
    for i, x in enumerate(mf):
        out.append(x)
        if i >= first:
            tgt = min(m, -(-m * (i - first + 1) // max(1, (n - first - 1)))) if n - first - 1 > 0 else m
            while o < tgt: out.append(others[o]); o += 1
    out += others[o:]
    return "\n".join(out)

MF = "v_mfma_f32_32x32x16_bf16"
SLOT2, CH2, NS2 = 30720, 3840, 5
L_WPHI = 153600
L_T, L_R, L_ZL, L_KF, L_ZB = 0, 69632, 135168, 147456, 155648
L_AF, L_BF, L_RS = 157696, 159744, 161792
RPG = int(os.environ.get('RPG', 2)); DOFF = int(os.environ.get('DOFF', 0))
XST = 2048 if 'xlin' in EXP else 64
def k2():
    global PF3
    if 'nopf' in EXP: PF3 = False
    k = Kern("g1_kernel", 256, 512, lds=163840, nvgpr=256, nsgpr=80)
    k("s_load_dwordx4 s[4:7], s[0:1], 8\ns_load_dwordx4 s[8:11], s[0:1], 40\ns_load_dwordx4 s[72:75], s[0:1], 80\ns_load_dwordx2 s[66:67], s[0:1], 0\ns_load_dwordx2 s[62:63], s[0:1], 24\ns_load_dwordx2 s[64:65], s[0:1], 56")
    k("s_cmp_ge_u32 s2, 256\ns_cbranch_scc1 .g1_end")
    for i in range(8): k.stamp(i)
    k("""v_lshrrev_b32 v2, 6, v0
    v_and_b32 v1, 63, v0
    s_and_b32 s44, s2, 7
    s_lshr_b32 s45, s2, 3
    v_readfirstlane_b32 s14, v2
    s_lshr_b32 s19, s45, 4
    s_and_b32 s17, s45, 7
    s_bfe_u32 s18, s45, 0x10003
    s_lshl_b32 s44, s44, 1
    s_add_u32 s18, s18, s44
    s_and_b32 s15, s14, 3
    s_lshr_b32 s16, s14, 2""")
    k("""v_lshrrev_b32 v7, 5, v1
    v_bfe_u32 v8, v1, 2, 2
    v_bfe_u32 v9, v1, 4, 1
    v_lshlrev_b32 v9, 5, v9
    v_and_b32 v10, 3, v1
    v_lshl_add_u32 v9, v10, 3, v9
    v_cmp_le_u32 vcc, 28, v1
    v_lshlrev_b32 v2, 4, v1
    s_mul_i32 s39, s14, 3840
    s_mul_i32 s44, s15, 7680
    v_cndmask_b32 v10, 0, 1, vcc
    v_mul_u32_u24 v11, 28, v10
    v_sub_u32 v11, v1, v11
    v_and_b32 v12, 31, v1
    v_bfe_u32 v13, v1, 2, 2
    v_xor_b32 v13, v13, v7
    v_lshlrev_b32 v13, 4, v13
    v_lshl_add_u32 v13, v12, 6, v13
    v_add_u32 v5, s44, v13
    v_xor_b32 v243, 32, v5
    v_lshrrev_b32 v12, 2, v1
    v_lshrrev_b32 v13, 4, v1
    v_xor_b32 v13, v13, v1
    v_and_b32 v13, 3, v13
    v_lshlrev_b32 v13, 4, v13
    v_lshl_add_u32 v244, v12, 11, v13
    v_add_u32 v245, 31744, v244
    v_mov_b32 v248, 0
    v_mov_b32 v254, 0
    v_lshlrev_b32 v246, 5, v1
    s_mov_b32 s56, 0x3f803f80""")
    k(f"""v_mul_u32_u24 v6, 7680, v7
    v_mul_u32_u24 v12, 448, v8
    v_add3_u32 v6, v6, v12, v9
    s_lshl_b32 s44, s14, 2
    v_add_u32 v10, s44, v10""")
    if 'xlin' in EXP: k("v_lshlrev_b32 v244, 4, v1\nv_mov_b32 v245, v244")
    k("s_waitcnt lgkmcnt(0)")
    k(f"""s_lshl_b32 s44, s17, 3
    s_add_u32 s44, s44, s14
    s_lshl_b32 s44, s44, 16""")
    srd(k, 24, 66, 67, 65536, "s44")
    srd(k, 32, 66, 67, 4*MB)
    k("""s_lshl_b32 s44, s2, 3
    s_add_u32 s57, s44, s14
    s_lshl_b32 s44, s57, 11
    buffer_load_dwordx4 v[192:195], v246, s[32:35], s44 offen
    buffer_load_dwordx4 v[196:199], v246, s[32:35], s44 offen offset:16""")
    srd(k, 28, 74, 75, WSZ)
    srd(k, 68, 72, 73, 256)
    k(f"""s_or_b32 s44, s14, s2
    s_cmp_eq_u32 s44, 0
    s_cbranch_scc0 .g1_nz
    s_memrealtime s[44:45]
    s_waitcnt lgkmcnt(0)
    v_mov_b32 v12, s44
    v_mov_b32 v13, s45
    s_mov_b64 exec, 1
    buffer_store_dwordx2 v[12:13], v254, s[68:71], 0 offen sc1
    s_mov_b64 exec, -1
    .g1_nz:""")
    k("s_cmp_eq_u32 s17, 0\ns_cselect_b32 s36, 256, 0\ns_mov_b32 s59, -1\ns_mov_b32 s78, 0\ns_mov_b32 s79, 0\ns_mov_b32 s40, 4\ns_mov_b32 s58, 0\ns_mov_b32 s46, 0\ns_mov_b32 s47, 0xffff0000")
    k(f"""s_lshl_b32 s44, s19, 4
    s_add_u32 s44, s44, s18
    s_mul_i32 s60, s44, 7168
    s_lshl_b32 s45, s16, 12
    s_add_u32 s60, s60, s45
    s_add_u32 s60, s60, {CSUM}
    s_lshl_b32 s61, s17, 11
    s_lshl_b32 s45, s15, 9
    s_add_u32 s61, s61, s45
    s_add_u32 s61, s61, {STATS}""")
    k(f"""s_lshl_b32 s44, s17, 3
    s_lshl_b32 s45, s15, 1
    s_add_u32 s44, s44, s45
    s_mul_i32 s48, s44, {A3S}
    s_add_u32 s48, s48, {A3}""")
    k("s_cmp_eq_u32 s19, 0\ns_cbranch_scc1 .g1_qkv")

    def dma(k):
        return ["s_mov_b32 m0, s39\ns_mov_b64 exec, s[42:43]\nbuffer_load_dwordx4 v3, s[20:23], s37 offen lds\nbuffer_load_dwordx4 v4, s[20:23], s37 offen offset:896 lds\ns_mov_b64 exec, -1",
                "s_add_u32 m0, s39, 1792\ns_add_u32 s37, s37, s38\nbuffer_load_dwordx4 v244, s[24:27], s36 offen lds\nbuffer_load_dwordx4 v245, s[24:27], s36 offen offset:1024 lds\ns_add_u32 s36, s36, 64\ns_cmp_eq_u32 s36, s59\ns_cselect_b32 s36, s78, s36\ns_cselect_b32 s37, s79, s37\ns_cmp_eq_u32 s36, 2048\ns_cselect_b32 s36, 0x100000, s36\ns_cselect_b32 s37, 0x10000000, s37"]
    def adv_w():
        return f"s_add_u32 s39, s39, {SLOT2}\ns_add_u32 s46, s46, 1\ns_cmp_eq_u32 s46, {NS2}\ns_cselect_b32 s41, {-(NS2-1)*SLOT2}, s49\ns_cselect_b32 s46, 0, s46\ns_cselect_b32 s44, {NS2*SLOT2}, 0\ns_sub_u32 s39, s39, s44"
    def reads(st, sub, woffs):
        X = 16 + 24*st; W = 24 + 24*st
        r = []
        xa = "v243" if sub else "v5"
        r.append(f"ds_read_b128 v[{X}:{X+3}], {xa} offset:1792")
        for nb, wo in enumerate(woffs):
            for q in range(2):
                r.append(f"ds_read_b64_tr_b16 v[{W+4*nb+2*q}:{W+4*nb+2*q+1}], v6 offset:{(4*sub+q)*CH2+wo}")
            if nb == 0: r.append(f"ds_read_b128 v[{X+4}:{X+7}], {xa} offset:{CH2+1792}")
        return r
    def mfmas(st, nnb, swap=()):
        X = 16 + 24*st; W = 24 + 24*st
        r = []
        for nb in range(nnb):
            for mb in range(2):
                a = 64 + (nb*2+mb)*16
                wf, xf = vr(W+4*nb, 4), vr(X+4*mb, 4)
                if nb in swap: wf, xf = xf, wf
                r.append(f"{MF} {vr(a,16)}, {wf}, {xf}, {vr(a,16)}")
        return r
    def prologue_dmas(nacc):
        k(f"s_mov_b32 s49, {SLOT2}\ns_mov_b32 s12, s39\ns_add_u32 s13, s39, {NS2*SLOT2}")
        z = [f"v_mov_b32 v{a}, 0" for a in range(64, 64 + nacc)]
        k2_ = Kern("tmp_kernel", 1, 1); rowstats(k2_); st = [x.strip() for x in k2_.lines]
        for s in range(4):
            if s == 2: k("s_waitcnt vmcnt(8)")
            for gi, g in enumerate(dma4()):
                k(g)
                if s < 2:
                    q = 4*s + gi; k("\n".join(z[q*nacc//8:(q+1)*nacc//8]))
                else:
                    q = 4*(s-2) + gi; n = len(st) - 4; k("\n".join(st[q*n//8:(q+1)*n//8]))
        k("""s_lshl_b32 s36, s17, 8
        s_lshr_b32 s44, s38, 6
        s_mul_i32 s37, s36, s44
        s_add_u32 s59, s36, 256
        s_cmp_le_u32 s17, 1
        s_cselect_b32 s78, 2, 1
        s_lshl_b32 s78, s78, 8
        s_mul_i32 s79, s78, s44""")
        k("\n".join(st[-4:]))
    def fifth():
        for g in dma4(): k(g)
    def dots(st, cnb):
        if cnb is None: return []
        W = 24 + 24*st + 4*cnb
        return [f"v_dot2c_f32_bf16 v248, s56, v{W+t}" for t in range(4)]
    def dma4():
        return ["s_mov_b32 m0, s39\ns_mov_b64 exec, s[42:43]\nbuffer_load_dwordx4 v3, s[20:23], s37 offen lds\ns_mov_b64 exec, -1",
                "s_mov_b64 exec, s[42:43]\nbuffer_load_dwordx4 v4, s[20:23], s37 offen offset:896 lds\ns_mov_b64 exec, -1\ns_add_u32 m0, s39, 1792\ns_add_u32 s37, s37, s38",
                f"buffer_load_dwordx4 v244, s[24:27], s36 offen lds\ns_add_u32 s39, s39, {SLOT2}\ns_cmp_eq_u32 s39, s13\ns_cselect_b32 s39, s12, s39",
                "buffer_load_dwordx4 v245, s[24:27], s36 offen offset:1024 lds\ns_add_u32 s36, s36, 64\ns_cmp_eq_u32 s36, s59\ns_cselect_b32 s36, s78, s36\ns_cselect_b32 s37, s79, s37\ns_cmp_eq_u32 s36, 2048\ns_cselect_b32 s36, 0x100000, s36\ns_cselect_b32 s37, 0x10000000, s37"]
    def place(mf, rd, dm, dt):
        n = len(mf); slots = [[] for _ in range(n)]
        per = RPG
        for i, r in enumerate(rd): slots[min(n-1, i // per)].append(r)
        first = max(0, n - len(dm) - DOFF)
        for i, d in enumerate(dm): slots[min(n-1, first + i)].append(d)
        for i, d in enumerate(dt): slots[min(n-1, n - len(dt) + i)].append(d)
        return "\n".join(x for i in range(n) for x in [mf[i]] + slots[i])
    def mainloop(tag, woffs, swap, cnb, early):
        nnb = len(woffs)
        rdadv = f"s_add_u32 s46, s46, 1\ns_cmp_eq_u32 s46, {NS2}\ns_cselect_b32 s41, {-(NS2-1)*SLOT2}, s49\ns_cselect_b32 s46, 0, s46"
        k(f".g1_loop{tag}:")
        k("s_waitcnt lgkmcnt(0)")
        k(place(mfmas(0, nnb, swap), reads(1, 1, woffs) + [rdadv + "\nv_add_u32 v5, s41, v5\nv_add_u32 v6, s41, v6\nv_add_u32 v243, s41, v243"], dma4() if early else [], dots(0, cnb)))
        k("s_sub_u32 s40, s40, 1\ns_waitcnt vmcnt(12) lgkmcnt(0)\ns_barrier")
        k(place(mfmas(1, nnb, swap), reads(0, 0, woffs), [] if early else dma4(), dots(1, cnb)))
        k(f"s_cmp_lg_u32 s40, 0\ns_cbranch_scc1 .g1_loop{tag}")
    def rowstats(k):
        def red(a, t):
            for sh in (8, 4, 2, 1): k(f"v_add_f32_dpp v{a}, v{a}, v{a} row_ror:{sh} row_mask:0xf bank_mask:0xf")
            k(f"v_mov_b32 v{t}, v{a}\nv_permlane16_swap_b32 v{a}, v{t}\nv_add_f32 v{a}, v{a}, v{t}")
            xsum_half(k, a, t)
        for i in range(8): k(f"v_lshlrev_b32 v{200+2*i}, 16, v{192+i}\nv_and_b32 v{201+2*i}, s47, v{192+i}")
        for i in range(4): k(f"v_add_f32 v{216+i}, v{200+4*i}, v{201+4*i}\nv_add_f32 v{220+i}, v{202+4*i}, v{203+4*i}")
        for i in range(4): k(f"v_add_f32 v{216+i}, v{216+i}, v{220+i}")
        k("v_add_f32 v216, v216, v217\nv_add_f32 v218, v218, v219\nv_add_f32 v216, v216, v218")
        red(216, 217)
        k(f"v_mul_f32 v216, {f2u(1/1024)}, v216")
        for i in range(16): k(f"v_sub_f32 v{200+i}, v{200+i}, v216")
        for i in range(4): k(f"v_mul_f32 v{220+i}, v{200+i}, v{200+i}")
        for i in range(4, 16): k(f"v_fmac_f32 v{220+(i&3)}, v{200+i}, v{200+i}")
        k("v_add_f32 v220, v220, v221\nv_add_f32 v222, v222, v223\nv_add_f32 v217, v220, v222")
        red(217, 218)
        k(f"v_mul_f32 v217, {f2u(1/1024)}, v217")
        rnd_bf16(k, 217)
        k(f"v_add_f32 v217, {f2u(1e-5)}, v217\nv_sub_f32 v216, 0, v216"); rnd_bf16(k, 217)
        k(f"""v_sqrt_f32 v217, v217
        s_lshl_b32 s57, s57, 3
        s_add_u32 s57, s57, {STATS}
        v_cvt_pk_bf16_f32 v216, v216, v217
        v_and_b32 v217, s47, v216
        v_rcp_f32 v217, v217
        s_mov_b64 exec, 1
        buffer_store_dwordx2 v[216:217], v254, s[28:31], s57 offen sc1
        s_mov_b64 exec, -1""")
    def loops(tag, woffs, swap, early, pf=None, late=None):
        nnb = len(woffs)
        L = lambda x: f".g1_{x}{tag}"
        for r in reads(0, 0, woffs): k(r)
        if not early: fifth()
        k(f"s_branch .g1_loop{tag}")
        for mw in range(nnb):
            mainloop(f"{tag}d{mw}", woffs, swap, mw, early)
            k(f"s_branch {L('pub')}")
        mainloop(tag, woffs, swap, None, early)
        k(f"""s_add_u32 s58, s58, 1
        s_mov_b32 s40, 4
        s_cmp_eq_u32 s58, 2
        s_cbranch_scc1 .g1_loop{tag}
        s_cmp_eq_u32 s58, 3
        s_cbranch_scc1 {L('p2')}
        s_cmp_eq_u32 s58, 4
        s_cbranch_scc1 {L('p3')}
        s_cmp_eq_u32 s58, 5
        s_cbranch_scc1 {L('p4')}
        s_cmp_eq_u32 s58, 6
        s_cbranch_scc1 {L('done')}
        s_sub_u32 s78, s59, 0
        s_sub_u32 s59, s59, 256
        s_lshr_b32 s44, s38, 6
        s_mul_i32 s79, s78, s44""")
        if 'ph' in EXP: k.stamp(3)
        for mw in range(nnb): k(f"s_cmp_eq_u32 s15, {mw}\ns_cbranch_scc1 .g1_loop{tag}d{mw}")
        k(f"s_branch .g1_loop{tag}\n{L('p2')}:")
        if 'ph' in EXP: k.stamp(4)
        k("s_mov_b32 s40, 12")
        if pf: pf()
        k(f"""s_cmp_eq_u32 s14, 0
        s_cbranch_scc0 .g1_loop{tag}
        v_mov_b32 v248, 1
        s_mov_b64 exec, 1
        buffer_atomic_add v248, v254, s[68:71], 0 offen offset:8 sc1
        s_mov_b64 exec, -1
        s_branch .g1_loop{tag}""")
        k(f"{L('pub')}:")
        xsum_half(k, 248, 249)
        k(f"""v_and_b32 v249, 31, v1
        v_lshlrev_b32 v249, 5, v249
        s_lshl_b32 s44, s15, 10
        s_lshl_b32 s45, s17, 2
        s_add_u32 s44, s44, s45
        s_add_u32 s44, s44, s60
        s_mov_b32 exec_hi, 0
        buffer_store_dword v248, v249, s[28:31], s44 offen sc1
        s_mov_b64 exec, -1
        s_mov_b32 s58, 2
        s_mov_b32 s40, 4
        s_branch .g1_loop{tag}""")
        k(f"{L('p3')}:")
        if 'ph' in EXP: k.stamp(5)
        k(f"""buffer_load_dwordx4 v[216:219], v254, s[68:71], 0 offen
        s_branch .g1_loop{tag}
        {L('p4')}:""")
        if 'ph' in EXP: k.stamp(6)
        k(f"""
        s_mov_b32 s44, {POLL}
        {L('p4l')}:
        v_readfirstlane_b32 s45, v218
        v_readfirstlane_b32 s76, v216
        v_readfirstlane_b32 s77, v217
        s_cmp_eq_u32 s45, 256
        s_cbranch_scc1 {L('p4ok')}
        buffer_load_dwordx4 v[216:219], v254, s[68:71], 0 offen sc1
        s_sub_u32 s44, s44, 1
        s_waitcnt vmcnt(0)
        s_cmp_lg_u32 s44, 0
        s_cbranch_scc1 {L('p4l')}
        {L('p4ok')}:
        v_and_b32 v249, 31, v1
        v_lshlrev_b32 v248, 3, v249
        v_lshlrev_b32 v249, 5, v249
        v_lshl_add_u32 v249, v7, 4, v249
        buffer_load_dwordx2 v[240:241], v248, s[28:31], s61 offen sc1
        buffer_load_dwordx2 v[246:247], v248, s[28:31], s61 offen offset:256 sc1""")
        for nb in range(nnb): k(f"buffer_load_dwordx4 v[{224+4*nb}:{227+4*nb}], v249, s[28:31], s60 offen offset:{1024*nb} sc1")
        if late: late()
        k(f"s_branch .g1_loop{tag}\n{L('done')}:")
    def fixup(nnb, swap, b1, extra=None):
        k("s_waitcnt vmcnt(0) lgkmcnt(0)")
        if extra: extra()
        for i in (18, 19, 22, 23): k(f"v_mov_b32 v{i}, 0")
        k("""v_mov_b32 v56, v241
        v_mov_b32 v57, v241
        v_mov_b32 v58, v247
        v_mov_b32 v59, v247
        v_cmp_gt_u32 vcc, 32, v1
        s_mov_b32 s44, 0x01000100
        v_perm_b32 v16, v240, v240, s44
        v_perm_b32 v20, v246, v246, s44
        v_cndmask_b32 v17, 0, v240, vcc
        v_cndmask_b32 v21, 0, v246, vcc
        v_cndmask_b32 v16, 0, v16, vcc
        v_cndmask_b32 v20, 0, v20, vcc""")
        for nb in range(nnb):
            c = 224 + 4*nb; a = 24 + 4*nb
            k(f"v_add_f32 v{c}, v{c}, v{c+1}\nv_add_f32 v{c+2}, v{c+2}, v{c+3}\nv_mov_b32 v{a+2}, 0\nv_add_f32 v{c}, v{c}, v{c+2}\nv_mov_b32 v{a+3}, 0")
        for nb in range(nnb): k(f"v_mov_b32 v{225+4*nb}, v{224+4*nb}")
        for nb in range(nnb): k(f"v_permlane32_swap_b32 v{224+4*nb}, v{225+4*nb}")
        for nb in range(nnb): k(f"v_add_f32 v{224+4*nb}, v{224+4*nb}, v{225+4*nb}")
        for nb in range(nnb): k(f"v_cvt_pk_bf16_f32 v{225+4*nb}, v{224+4*nb}, v{224+4*nb}")
        for nb in range(nnb): k(f"v_lshlrev_b32 v{225+4*nb}, 16, v{225+4*nb}")
        for nb in range(nnb): k(f"v_sub_f32 v{224+4*nb}, v{224+4*nb}, v{225+4*nb}")
        for nb in range(nnb): k(f"v_cvt_pk_bf16_f32 v{226+4*nb}, v{224+4*nb}, v{224+4*nb}")
        for nb in range(nnb): k(f"v_lshlrev_b32 v{226+4*nb}, 16, v{226+4*nb}")
        for nb in range(nnb): k(f"v_sub_f32 v{224+4*nb}, v{224+4*nb}, v{226+4*nb}")
        for nb in range(nnb):
            k(f"v_cvt_pk_bf16_f32 v{24+4*nb}, v{225+4*nb}, v{226+4*nb}")
            if b1: k(f"v_lshlrev_b32 v{250+nb}, 16, v{250+nb}\nv_cvt_pk_bf16_f32 v{25+4*nb}, v{224+4*nb}, v{250+nb}")
            else: k(f"v_cvt_pk_bf16_f32 v{25+4*nb}, v{224+4*nb}, 0")
        for x in mfmas(0, nnb, swap): k(x)

    def wfill(tag):
        from gen3 import SLOT, CH, NS
        k(f"""s_and_b32 s39, s2, 3
        s_sub_u32 s36, s39, 1
        s_mul_i32 s36, s36, {37 << 16}""")
        srd(k, 24, 64, 65, 3584*2048)
        k(f"""s_mul_i32 s40, s39, 5
        s_lshl_b32 s40, 0x3f, s40
        s_lshr_b32 s40, s40, 5
        s_mov_b32 s41, 0
        s_mov_b32 s38, {FLAGS + FL_G + 1024}
        s_cmp_eq_u32 s39, 0
        s_cbranch_scc0 .g1_wf{tag}
        s_mov_b32 s36, 0
        s_mov_b32 s40, 0xffff
        s_mov_b32 s38, {FLAGS + FL_G}""")
        srd(k, 24, 62, 63, 2*MB)
        k(f""".g1_wf{tag}:
        v_lshrrev_b32 v5, 4, v1
        v_bfe_u32 v6, v1, 2, 2
        v_xor_b32 v6, v6, v5
        v_lshlrev_b32 v3, 11, v5
        v_lshl_add_u32 v3, v6, 6, v3
        v_and_b32 v6, 3, v1
        v_lshl_add_u32 v3, v6, 4, v3
        s_lshl_b32 s37, s15, 14
        s_lshr_b32 s39, s2, 5
        s_lshl_b32 s39, s39, 8
        s_add_u32 s37, s37, s39
        v_add_u32 v3, s37, v3
        v_add_u32 v4, 7168, v3
        s_mul_i32 s37, s15, {CH}
        s_bfe_u32 s39, s2, 0x10002
        s_lshl_b32 s39, s39, 9
        s_add_u32 s38, s38, s39
        s_bfe_u32 s39, s2, 0x20003
        s_lshl_b32 s39, s39, 7
        s_add_u32 s38, s38, s39
        v_lshlrev_b32 v5, 3, v1
        v_mov_b32 v10, 0
        v_mov_b32 v11, 0""")
        for s_ in range(NS):
            k(f"""s_add_u32 m0, s37, {s_*SLOT}
            s_nop 0
            buffer_load_dwordx4 v3, s[24:27], s36 offen lds
            buffer_load_dwordx4 v4, s[24:27], s36 offen offset:1024 lds
            s_add_u32 s36, s36, 65536""")
    srd(k, 20, 8, 9, 1024*7168)
    k(f"""s_mov_b32 s38, {32*7168}
    s_mul_i32 s37, s36, {7168//2}
    s_mov_b32 s42, -1
    s_mov_b32 s43, 0x00ffffff
    s_mul_i32 s44, s18, 448
    v_mul_u32_u24 v3, 7168, v10
    v_lshl_add_u32 v3, v11, 4, v3
    v_add_u32 v3, s44, v3
    v_add_u32 v4, {2*7168-896}, v3
    s_lshl_b32 s45, s16, 8
    s_add_u32 s44, s44, s45
    v_add_u32 v6, s45, v6
    v_and_b32 v12, 31, v1
    v_lshl_add_u32 v12, v12, 1, s44""")
    prologue_dmas(128)
    srd(k, 32, 10, 11, 3584*2)
    k(f"""s_mul_i32 s44, s18, 14
    s_lshl_b32 s45, s16, 3
    s_add_u32 s44, s44, s45
    s_add_u32 s44, s44, 64
    s_lshl_b32 s44, s44, 10
    s_add_u32 s48, s48, s44
    s_add_u32 s50, s48, {A3S}
    s_mov_b32 s51, {f2u(-2.3022081)}
    s_mov_b32 s52, {f2u(-0.10294324)}""")
    k("s_waitcnt vmcnt(13)\ns_barrier")
    k.stamp(1)
    k("s_cmp_eq_u32 s16, 0\ns_cbranch_scc0 .g1_f3")
    pk = lambda r: f"v[{r}:{r+1}]"
    def gelu_tile(nb, mb):
        a = 64 + (nb*2+mb)*16
        T = 192 + 16*((nb*2+mb) & 1)
        P = 224 + 8*((nb*2+mb) & 1)
        for i in range(0, 16, 2): k(f"v_pk_mul_f32 {pk(a+i)}, {pk(a+i)}, {pk(56+2*mb)}")
        for i in range(0, 16, 2): k(f"v_pk_mul_f32 {pk(T+i)}, {pk(a+i)}, {pk(a+i)}")
        for i in range(0, 16, 2): k(f"v_pk_fma_f32 {pk(T+i)}, {pk(T+i)}, s[52:53], v[60:61]")
        for i in range(0, 16, 2): k(f"v_pk_mul_f32 {pk(T+i)}, {pk(T+i)}, {pk(a+i)}")
        for i in range(16): k(f"v_exp_f32 v{T+i}, v{T+i}")
        for i in range(0, 16, 2): k(f"v_pk_add_f32 {pk(T+i)}, {pk(T+i)}, s[54:55]")
        for i in range(16): k(f"v_rcp_f32 v{T+i}, v{T+i}")
        for i in range(0, 16, 2): k(f"v_pk_mul_f32 {pk(T+i)}, {pk(T+i)}, {pk(a+i)}")
        for i in range(8): k(f"v_cvt_pk_bf16_f32 v{P+i}, v{T+2*i}, v{T+2*i+1}")
        for ks in range(2):
            off = (2*nb+ks)*1024
            va = "v2" if off < 4096 else "v14"
            k(f"buffer_store_dwordx4 v[{P+4*ks}:{P+4*ks+3}], {va}, s[28:31], s{48+2*mb} offen offset:{off & 4095} sc1")
    for tag, nnb in (("f4", 4), ("f3", 3)):
        if tag == "f3": k(".g1_f3:")
        woffs = [64*nb for nb in range(nnb)]
        def pf():
            srd(k, 72, 64, 65, 3584*2048)
            k("""s_sub_u32 s44, s2, 128
            s_lshl_b32 s44, s44, 3
            s_add_u32 s44, s44, s14
            s_mul_i32 s45, s44, 7168
            s_lshl_b32 s44, s44, 11
            v_lshlrev_b32 v13, 7, v1
            s_mov_b64 exec, s[42:43]
            buffer_load_dword v220, v13, s[72:75], s45 offen""")
            srd(k, 72, 62, 63, 2*MB)
            k("""s_mov_b64 exec, 0xffff
            buffer_load_dword v221, v13, s[72:75], s44 offen
            s_mov_b64 exec, -1""")
        def late():
            for nb in range(nnb): k(f"buffer_load_ushort v{250+nb}, v12, s[32:35], 0 offen offset:{64*nb}")
        loops(tag, woffs, (), nnb == 3, pf if PF3 else None, late)
        k.stamp(2)
        k("v_mov_b32 v60, s51\nv_mov_b32 v61, s51\nv_add_u32 v14, 4096, v2\ns_mov_b32 s53, s52\ns_mov_b32 s54, 1.0\ns_mov_b32 s55, 1.0")
        fixup(nnb, (), True, lambda: k("s_barrier"))
        if nnb == 3: wfill("f")
        for nb in range(nnb):
            for mb in range(2): gelu_tile(nb, mb)
        if 'ph' not in EXP: k.stamp(3)
        k.prof_end(1, 28)
        k("s_branch .g2_entry")

    k(".g1_qkv:")
    srd(k, 20, 4, 5, 1024*6144)
    srd(k, 32, 6, 7, 65536)
    k(f"""s_mov_b32 s38, {32*6144}
    s_mul_i32 s37, s36, {6144//2}
    s_mov_b32 s42, 0xf0ffffff
    s_mov_b32 s43, 0x000fffff
    s_lshl_b32 s44, s18, 7
    v_mul_u32_u24 v3, 6144, v10
    v_lshrrev_b32 v12, 3, v11
    v_lshl_add_u32 v3, v12, 11, v3
    v_and_b32 v12, 7, v11
    v_lshl_add_u32 v3, v12, 4, v3
    v_add_u32 v3, s44, v3
    v_add_u32 v4, {2*6144-896}, v3
    s_lshl_b32 s45, s16, 6
    v_add_u32 v6, s45, v6
    s_lshl_b32 s53, s18, 1
    s_add_u32 s53, s53, s16""")
    k(f"""s_cmp_lt_u32 s15, 2
    s_cbranch_scc0 .g1_nophi
    s_lshl_b32 s44, s53, 11
    s_lshl_b32 s45, s15, 10
    s_add_u32 s44, s44, s45
    s_lshl_b32 s54, s16, 11
    s_add_u32 s45, s45, s54
    s_add_u32 m0, s45, {L_WPHI}
    s_nop 0
    buffer_load_dwordx4 v2, s[32:35], s44 offen lds
    .g1_nophi:""")
    prologue_dmas(96)
    k(f"""v_lshl_add_u32 v12, v7, 2, v8
    v_lshl_add_u32 v13, v12, 6, v9
    s_lshl_b32 s44, s16, 11
    s_add_u32 s44, s44, {L_WPHI}
    v_add_u32 v13, s44, v13""")
    k("s_waitcnt vmcnt(13)\ns_barrier")
    k.stamp(1)
    for ks in range(2):
        for q in range(2):
            k(f"ds_read_b64_tr_b16 v[{160+4*ks+2*q}:{161+4*ks+2*q}], v13 offset:{(16*ks+8*q)*64}")
    woffs = [0, 128, 256]
    k("s_cmp_eq_u32 s16, 0\ns_cbranch_scc0 .g1_q1")
    loops("q", woffs, (2,), False)
    k("s_branch .g1_qdone\n.g1_q1:")
    loops("r", woffs, (2,), True)
    k(".g1_qdone:")
    k.stamp(2)
    def rsrows():
        k(f"""s_lshl_b32 s44, s14, 8
        s_add_u32 s44, s44, {L_RS}
        v_and_b32 v253, 31, v1
        v_lshl_add_u32 v253, v253, 2, s44
        ds_write_b32 v253, v241
        ds_write_b32 v253, v247 offset:128
        v_lshl_add_u32 v253, v7, 4, s44
        s_waitcnt lgkmcnt(0)""")
        for mb in range(2):
            for j in range(4): k(f"ds_read_b128 v[{192+16*mb+4*j}:{195+16*mb+4*j}], v253 offset:{128*mb+32*j}")
    fixup(3, (2,), False, rsrows)
    def pack(dst, src):
        for i in range(8): k(f"v_cvt_pk_bf16_f32 v{dst+i}, v{src+2*i}, v{src+2*i+1}")
    k(f"""s_mul_i32 s44, s14, 8704
    v_and_b32 v14, 31, v1
    v_mul_u32_u24 v14, 136, v14
    v_lshl_add_u32 v14, v7, 3, v14
    v_add_u32 v14, s44, v14
    v_mul_u32_u24 v15, 136, v12
    v_add3_u32 v15, v15, v9, s44
    s_mov_b32 s55, {f2u(LOG2E)}""")
    k("s_waitcnt lgkmcnt(0)")
    for t in (2, 3, 0, 1):
        for i in range(0, 16, 2): k(f"v_pk_mul_f32 {pk(64+16*t+i)}, {pk(64+16*t+i)}, {pk(56+2*(t&1))}")
    for i in range(0, 32, 2): k(f"v_pk_mul_f32 {pk(128+i)}, {pk(128+i)}, {pk(192+i)}")
    for mb in range(2): pack(16 + 8*mb, 96 + 16*mb)
    for mb in range(2): pack(48 + 8*mb, 64 + 16*mb)
    for mb in range(2):
        for ks in range(2):
            k(f"{MF} {vr(64+16*mb,16)}, {vr(160+4*ks,4)}, {vr(16+8*mb+4*ks,4)}, {'0' if ks == 0 else vr(64+16*mb,16)}")
    for mb in range(2):
        for ks in range(2):
            k(f"{MF} {vr(96+16*mb,16)}, {vr(160+4*ks,4)}, {vr(48+8*mb+4*ks,4)}, {'0' if ks == 0 else vr(96+16*mb,16)}")
    for mb in range(2): pack(32 + 8*mb, 128 + 16*mb)
    k("s_barrier")
    def softmax(P, D):
        E, N = 128, 144
        for i in range(8): k(f"v_cvt_pk_bf16_f32 v{E+i}, v{P+2*i}, v{P+2*i+1}")
        for i in range(8): k(f"v_lshlrev_b32 v{P+2*i}, 16, v{E+i}\nv_and_b32 v{P+2*i+1}, s47, v{E+i}")
        k(f"v_max3_f32 v168, v{P}, v{P+1}, v{P+2}\nv_min3_f32 v169, v{P}, v{P+1}, v{P+2}")
        k(f"v_max3_f32 v170, v{P+3}, v{P+4}, v{P+5}\nv_min3_f32 v171, v{P+3}, v{P+4}, v{P+5}")
        for i in range(6, 14, 4):
            k(f"v_max3_f32 v168, v168, v{P+i}, v{P+i+1}\nv_min3_f32 v169, v169, v{P+i}, v{P+i+1}")
            k(f"v_max3_f32 v170, v170, v{P+i+2}, v{P+i+3}\nv_min3_f32 v171, v171, v{P+i+2}, v{P+i+3}")
        k(f"v_max3_f32 v168, v168, v{P+14}, v{P+15}\nv_min3_f32 v169, v169, v{P+14}, v{P+15}")
        k("v_max_f32 v168, v168, v170\nv_min_f32 v169, v169, v171")
        k("v_mov_b32 v170, v168\nv_mov_b32 v171, v169\ns_nop 0\nv_permlane32_swap_b32 v168, v170\nv_permlane32_swap_b32 v169, v171")
        k("v_max_f32 v168, v168, v170\nv_min_f32 v169, v169, v171")
        k("v_mul_f32 v168, s55, v168\nv_mul_f32 v169, s55, v169")
        for i in range(16):
            k(f"v_fma_f32 v{E+i}, v{P+i}, s55, -v168\nv_fma_f32 v{N+i}, -v{P+i}, s55, v169")
        for i in range(16): k(f"v_exp_f32 v{E+i}, v{E+i}\nv_exp_f32 v{N+i}, v{N+i}")
        k(f"v_add_f32 v168, v{E}, v{E+1}\nv_add_f32 v169, v{N}, v{N+1}\nv_add_f32 v170, v{E+2}, v{E+3}\nv_add_f32 v171, v{N+2}, v{N+3}")
        for i in range(4, 16, 2):
            k(f"v_add_f32 v168, v168, v{E+i}\nv_add_f32 v169, v169, v{N+i}\nv_add_f32 v170, v170, v{E+i+1}\nv_add_f32 v171, v171, v{N+i+1}")
        k("v_add_f32 v168, v168, v170\nv_add_f32 v169, v169, v171")
        k("v_mov_b32 v170, v168\nv_mov_b32 v171, v169\ns_nop 0\nv_permlane32_swap_b32 v168, v170\nv_permlane32_swap_b32 v169, v171")
        k("v_add_f32 v168, v168, v170\nv_add_f32 v169, v169, v171\nv_rcp_f32 v168, v168\nv_rcp_f32 v169, v169")
        for i in range(16): k(f"v_mul_f32 v{E+i}, v{E+i}, v168\nv_mul_f32 v{N+i}, v{N+i}, v169")
        for i in range(8): k(f"v_cvt_pk_bf16_f32 v{D+i}, v{E+2*i}, v{E+2*i+1}")
        for i in range(8): k(f"v_cvt_pk_bf16_f32 v{D+8+i}, v{N+2*i}, v{N+2*i+1}")
    for mb in range(2):
        D = 208 + 0
        D = 176 + 16*mb
        softmax(64 + 16*mb, D)
        for s in range(2):
            for j in range(4):
                k(f"ds_write_b64 v14, v[{D+8*s+2*j}:{D+8*s+2*j+1}] offset:{32*mb*136 + (32*s+8*j)*2}")
    k("s_waitcnt lgkmcnt(0)")
    n = 0
    for fb in range(2):
        for mb in range(2):
            for ks in range(2):
                f = 128 + ((fb*2+mb)*2+ks)*4
                for q in range(2):
                    k(f"ds_read_b64_tr_b16 v[{f+2*q}:{f+2*q+1}], v15 offset:{(32*mb+16*ks+8*q)*136 + fb*64}")
        if fb == 0: k("v_mov_b32 v168, 0\nv_mov_b32 v169, 0")
    for fb in range(2):
        k(f"s_waitcnt lgkmcnt({8 if fb == 0 else 0})")
        i = 0
        for mb in range(2):
            for ks in range(2):
                f = 128 + ((fb*2+mb)*2+ks)*4
                k(f"{MF} {vr(224+16*fb,16)}, {vr(f,4)}, {vr(32+8*mb+4*ks,4)}, {'0' if i == 0 else vr(224+16*fb,16)}")
                for t in range(4): k(f"v_dot2c_f32_bf16 v{168+fb}, s56, v{f+t}")
                i += 1
    k("v_permlane32_swap_b32 v168, v169\nv_add_f32 v168, v168, v169")
    k(f"""s_lshl_b32 s44, s14, 13
    v_add_u32 v14, s44, v2
    v_add_u32 v14, {L_R}, v14
    s_lshl_b32 s44, s14, 8
    v_lshlrev_b32 v13, 2, v1
    v_add_u32 v15, s44, v13
    v_add_u32 v15, {L_ZL}, v15
    ds_write_b32 v15, v168""")
    for qd in range(8): k(f"ds_write_b128 v14, v[{224+4*qd}:{227+4*qd}] offset:{qd*1024}")
    k(f"""s_lshl_b32 s44, s16, 15
    s_lshl_b32 s45, s15, 11
    s_add_u32 s44, s44, s45
    v_add_u32 v14, s44, v2
    v_add_u32 v14, {L_R}, v14
    s_lshl_b32 s44, s16, 10
    v_add_u32 v15, s44, v13
    v_add_u32 v15, {L_ZL}, v15
    s_lshl_b32 s57, s53, 16
    s_add_u32 s57, s57, s45
    s_add_u32 s57, s57, {KVP}
    s_lshl_b32 s44, s17, 13
    s_add_u32 s58, s57, s44
    s_lshl_b32 s59, s53, 11
    s_add_u32 s59, s59, {ZP}
    s_lshl_b32 s44, s17, 8
    s_add_u32 s60, s59, s44""")
    k("s_waitcnt lgkmcnt(0)\ns_barrier")
    for ww in range(4):
        for qq in range(2): k(f"ds_read_b128 v[{128+8*ww+4*qq}:{131+8*ww+4*qq}], v14 offset:{ww*8192+qq*1024}")
    for ww in range(4): k(f"ds_read_b32 v{168+ww}, v15 offset:{ww*256}")
    k("s_waitcnt lgkmcnt(4)")
    for i in range(8): k(f"v_add_f32 v{128+i}, v{128+i}, v{136+i}\nv_add_f32 v{144+i}, v{144+i}, v{152+i}")
    for i in range(8): k(f"v_add_f32 v{208+i}, v{128+i}, v{144+i}")
    k("buffer_store_dwordx4 v[208:211], v2, s[28:31], s58 offen sc1\nbuffer_store_dwordx4 v[212:215], v2, s[28:31], s58 offen offset:1024 sc1")
    k("""s_waitcnt lgkmcnt(0)
    v_add_f32 v168, v168, v169
    v_add_f32 v170, v170, v171
    v_add_f32 v216, v168, v170
    s_cmp_eq_u32 s15, 0
    s_cbranch_scc0 .g1_noz
    buffer_store_dword v216, v13, s[28:31], s60 offen sc1
    .g1_noz:""")
    if 'ph' not in EXP: k.stamp(3)
    softmax(96, 176)
    k("s_waitcnt vmcnt(0)\ns_barrier")
    if 'ph' not in EXP: k.stamp(4)
    k(f"""s_lshl_b32 s61, s18, 7
    s_add_u32 s61, s61, {FLAGS + FL_K2}
    s_cmp_eq_u32 s14, 0
    s_cbranch_scc0 .g1_nofl
    s_lshl_b32 s44, s17, 3
    v_mov_b32 v14, s44
    v_mov_b32 v220, s76
    v_mov_b32 v221, s77
    s_mov_b64 exec, 1
    buffer_store_dwordx2 v[220:221], v14, s[28:31], s61 offen sc1
    s_mov_b64 exec, -1
    .g1_nofl:
    s_cmp_eq_u32 s16, 0
    s_cbranch_scc1 .g1_nowf""")
    wfill("q")
    k(".g1_nowf:")
    softmax(112, 192)
    if 'ph' not in EXP: k.stamp(5)
    k(f"""s_cmp_eq_u32 s14, 0
    s_cbranch_scc0 .g1_polled
    s_mov_b32 s44, {POLL}
    v_lshlrev_b32 v14, 3, v1
    s_mov_b64 exec, 0xff
    .g1_poll:
    buffer_load_dwordx2 v[220:221], v14, s[28:31], s61 offen sc1
    s_waitcnt vmcnt(0)
    v_cmp_ne_u64 vcc, s[76:77], v[220:221]
    s_sub_u32 s44, s44, 1
    s_cbranch_vccz .g1_pdone
    s_sleep 1
    s_cmp_lg_u32 s44, 0
    s_cbranch_scc1 .g1_poll
    .g1_pdone:
    s_mov_b64 exec, -1
    .g1_polled:
    s_barrier""")
    if 'ph' not in EXP: k.stamp(6)
    for mm in range(8):
        k(f"buffer_load_dwordx4 v[{64+8*mm}:{67+8*mm}], v2, s[28:31], s57 offen sc1\nbuffer_load_dwordx4 v[{68+8*mm}:{71+8*mm}], v2, s[28:31], s57 offen offset:1024 sc1")
        if mm < 7: k("s_add_u32 s57, s57, 8192")
    k("s_cmp_eq_u32 s15, 0\ns_cbranch_scc0 .g1_noz2")
    for mm in range(8): k(f"buffer_load_dword v{128+mm}, v13, s[28:31], s59 offen offset:{256*mm} sc1")
    k(f"""s_lshl_b32 s44, s16, 7
    v_lshlrev_b32 v14, 1, v1
    v_add_u32 v14, s44, v14
    v_add_u32 v14, {L_ZB}, v14
    s_waitcnt vmcnt(0)
    v_add_f32 v128, v128, v129
    v_add_f32 v130, v130, v131
    v_add_f32 v132, v132, v133
    v_add_f32 v134, v134, v135
    v_add_f32 v128, v128, v130
    v_add_f32 v132, v132, v134
    v_add_f32 v128, v128, v132
    v_cvt_pk_bf16_f32 v128, v128, v128
    ds_write_b16 v14, v128
    .g1_noz2:""")
    k(f"""s_lshl_b32 s44, s16, 12
    v_add_u32 v14, s44, v2
    v_add_u32 v14, {L_KF}, v14
    s_lshl_b32 s45, s15, 10
    v_add_u32 v15, s45, v14
    s_lshl_b32 s44, s16, 7
    v_lshlrev_b32 v12, 3, v7
    v_add_u32 v12, s44, v12
    v_add_u32 v12, {L_ZB}, v12
    s_waitcnt vmcnt(0)""")
    for st in (32, 16, 8):
        for i in range(st): k(f"v_add_f32 v{64+i}, v{64+i}, v{64+st+i}")
    for i in range(4): k(f"v_cvt_pk_bf16_f32 v{64+i}, v{64+2*i}, v{65+2*i}")
    k("ds_write_b128 v15, v[64:67]\ns_waitcnt lgkmcnt(0)\ns_barrier")
    for f in range(4): k(f"ds_read_b128 v[{64+4*f}:{67+4*f}], v14 offset:{1024*f}")
    for f in range(4):
        for q in range(2): k(f"ds_read_b64 v[{80+4*f+2*q}:{81+4*f+2*q}], v12 offset:{(16*f+8*q)*2}")
    k(f"""s_lshl_b32 s44, s53, 11
    s_add_u32 s48, s48, s44
    s_add_u32 s50, s48, {A3S}
    s_waitcnt lgkmcnt(0)""")
    for mb in range(2):
        for f in range(4):
            k(f"{MF} {vr(128+16*mb,16)}, {vr(80+4*f,4)}, {vr(176+16*mb+4*f,4)}, {'0' if f == 0 else vr(128+16*mb,16)}")
        for f in range(4):
            k(f"{MF} {vr(96+16*mb,16)}, {vr(64+4*f,4)}, {vr(176+16*mb+4*f,4)}, {'0' if f == 0 else vr(96+16*mb,16)}")
    for mb in range(2):
        d = 128 + 16*mb; o = 96 + 16*mb; P = 16 + 8*mb
        rnd_bf16(k, d); k(f"v_add_f32 v{d}, {f2u(1e-6)}, v{d}"); rnd_bf16(k, d); k(f"v_rcp_f32 v{d}, v{d}")
        pack(P, o)
        for i in range(8): k(f"v_lshlrev_b32 v{o+2*i}, 16, v{P+i}\nv_and_b32 v{o+2*i+1}, s47, v{P+i}")
        for i in range(16): k(f"v_mul_f32 v{o+i}, v{o+i}, v{d}")
        pack(P, o)
        if mb == 0: k("""s_cmp_eq_u32 s16, 0
            s_cbranch_scc1 .g1_noep
            s_mov_b64 exec, s[40:41]
            buffer_load_dwordx2 v[10:11], v5, s[28:31], s38 offen sc1
            s_mov_b64 exec, -1
            .g1_noep:""")
        for ks in range(2):
            k(f"buffer_store_dwordx4 v[{P+4*ks}:{P+4*ks+3}], v2, s[28:31], s{48+2*mb} offen offset:{1024*ks} sc1")
    k.prof_end(1, 28)
    from gen3 import k3
    k3(k)
    k(".g1_end:")
    return k

def build(path, which=None, verbose=False):
    which = which or (k2,)
    ks = []
    for f in which:
        k = f()
        k.lines, n = haz.fix(k.name, k.lines, verbose)
        assert haz.check(k.name, k.lines + ["s_endpgm"]) == 0
        print(k.name, "lines", len(k.lines), "nop states", n)
        ks.append(k)
    open(path, "w").write(module(ks))
if __name__ == "__main__":
    if "-p" in sys.argv:
        Kern.prof = True
        build("prof%s.s" % EXP); sys.exit(0)
    build("recurrent_scan__linear_kernel_hedgehog__dense_activation_gelu__prompt.s", verbose="-v" in sys.argv)
```

```python
from asmlib import *
import gen as G
SLOT, CH, NS = 24576, 6144, 6
def k3(k):
    MF, f2u, srd = G.MF, G.f2u, G.srd
    A3, A3S, EX, FLAGS, MB, WSZ = G.A3, G.A3S, G.F1, G.FLAGS, G.MB, G.WSZ
    k(f""".g2_entry:
    s_mov_b64 exec, -1
    s_lshl_b32 s70, s19, 3
    s_add_u32 s70, s70, s17
    s_lshl_b32 s70, s70, 7
    s_lshl_b32 s71, s18, 3
    s_add_u32 s70, s70, s71
    s_add_u32 s70, s70, {FLAGS + G.FL_G}""")
    k("""s_load_dwordx2 s[4:5], s[0:1], 0
    s_load_dwordx4 s[8:11], s[0:1], 56
    s_load_dwordx2 s[12:13], s[0:1], 72
    s_load_dwordx2 s[14:15], s[0:1], 88""")
    for i in range(8): k.stamp(i)
    k("""v_lshrrev_b32 v2, 6, v0
    v_and_b32 v1, 63, v0
    s_and_b32 s17, s2, 3
    s_bfe_u32 s18, s2, 0x10002
    v_readfirstlane_b32 s16, v2
    s_lshl_b32 s18, s18, 2
    s_bfe_u32 s54, s2, 0x20003
    s_add_u32 s18, s18, s54
    s_lshr_b32 s19, s2, 5
    s_lshl_b32 s20, s18, 3
    s_add_u32 s20, s20, s19
    v_lshlrev_b32 v2, 4, v1
    s_sub_u32 s54, s17, 1
    s_mul_i32 s54, s54, 37
    s_cmp_eq_u32 s17, 3
    s_cselect_b32 s21, 38, 37
    s_lshl_b32 s48, s54, 11
    s_add_u32 s48, s48, 65536
    s_cmp_eq_u32 s17, 0
    s_cselect_b32 s21, 32, s21
    s_cselect_b32 s48, 0, s48""")
    k(f"""s_mul_i32 s54, s18, {8*A3S}
    s_add_u32 s54, s54, {A3 - 2048}
    s_waitcnt lgkmcnt(0)""")
    srd(k, 28, 14, 15, 8*A3S + 2048, "s54")
    srd(k, 32, 14, 15, WSZ)
    k("s_cmp_lt_u32 s16, 4\ns_cbranch_scc1 .g2_comp")
    k(f"""s_sub_u32 s22, s16, 4
    s_mov_b32 s49, s36
    v_mov_b32 v12, v5
    s_and_b32 s54, s22, 1
    s_lshl_b32 s54, s54, 1
    s_xor_b32 s54, s54, s17
    s_lshr_b32 s55, s22, 1
    s_lshl_b32 s55, s55, 2
    s_add_u32 s54, s54, s55
    s_xor_b32 s55, s54, 1
    s_mul_i32 s54, s54, {A3S}
    s_mul_i32 s55, s55, {A3S}
    s_add_u32 s55, s55, 2048
    v_add_u32 v5, s54, v2
    v_add_u32 v6, s55, v2
    s_mul_i32 s50, s22, {CH}
    s_add_u32 s51, s50, {SLOT*NS}""")
    def issue():
        k(f"""s_mov_b32 m0, s50
        s_add_u32 s52, s50, 4096
        buffer_load_dwordx4 v3, s[24:27], s49 offen lds
        buffer_load_dwordx4 v4, s[24:27], s49 offen offset:1024 lds
        buffer_load_dwordx4 v5, s[28:31], s48 offen offset:2048 lds
        buffer_load_dwordx4 v5, s[28:31], s48 offen offset:3072 lds
        s_mov_b32 m0, s52
        s_add_u32 s50, s50, {SLOT}
        buffer_load_dwordx4 v6, s[28:31], s48 offen lds
        buffer_load_dwordx4 v6, s[28:31], s48 offen offset:1024 lds
        s_add_u32 s48, s48, 2048
        s_add_u32 s49, s49, 65536
        s_cmp_eq_u32 s50, s51
        s_cselect_b32 s52, {SLOT*NS}, 0
        s_sub_u32 s50, s50, s52""")
    def afill():
        for s in range(NS):
            k(f"""s_add_u32 m0, s50, {s*SLOT}
            s_add_u32 s52, s50, {s*SLOT + 4096}
            buffer_load_dwordx4 v5, s[28:31], s48 offen offset:2048 lds
            buffer_load_dwordx4 v5, s[28:31], s48 offen offset:3072 lds
            s_mov_b32 m0, s52
            s_nop 0
            buffer_load_dwordx4 v6, s[28:31], s48 offen lds
            buffer_load_dwordx4 v6, s[28:31], s48 offen offset:1024 lds
            s_add_u32 s48, s48, 2048""")
    k(f"""s_mov_b32 s59, {G.POLL}
    s_mov_b64 exec, s[40:41]
    s_waitcnt vmcnt(4)
    v_cmp_ne_u64 vcc, s[76:77], v[10:11]
    s_mov_b64 exec, -1
    s_cbranch_vccnz .g2_slow""")
    afill()
    k(f"""s_waitcnt vmcnt({4*NS})
    s_barrier
    s_branch .g2_join
    .g2_slow:
    s_waitcnt vmcnt(0)
    s_barrier""")
    k.stamp(3)
    k(f"""s_mov_b64 exec, s[40:41]
    .g2_rpoll:
    buffer_load_dwordx2 v[10:11], v12, s[32:35], s38 offen sc1
    s_waitcnt vmcnt(0)
    v_cmp_ne_u64 vcc, s[76:77], v[10:11]
    s_sub_u32 s59, s59, 1
    s_cbranch_vccz .g2_rdone
    s_cmp_lg_u32 s59, 0
    s_cbranch_scc1 .g2_rpoll
    .g2_rdone:
    s_mov_b64 exec, -1""")
    k.stamp(4)
    afill()
    k(".g2_join:")
    k(f"s_sub_u32 s21, s21, {2*NS-2}\ns_waitcnt vmcnt({4*(NS-1)})\ns_barrier")
    k.stamp(1)
    for i in range(NS-2):
        k(f"s_waitcnt vmcnt({4*(NS-2) + 2*i})\ns_barrier")
        issue()
    k(".g2_lloop:")
    k(f"s_waitcnt vmcnt({6*(NS-2)})\ns_barrier")
    issue()
    k("s_sub_u32 s21, s21, 1\ns_cmp_lg_u32 s21, 0\ns_cbranch_scc1 .g2_lloop")
    k.stamp(2)
    for i in range(NS-2, -1, -1): k(f"s_waitcnt vmcnt({6*i})\ns_barrier")
    k("s_barrier")
    k.prof_end(2, 32)
    k("s_endpgm")
    k(".g2_comp:")
    srd(k, 36, 4, 5, 4*MB)
    srd(k, 40, 12, 13, 4*MB)
    srd(k, 44, 10, 11, 2048)
    k(f"""s_and_b32 s22, s16, 1
    s_lshr_b32 s23, s16, 1
    v_lshrrev_b32 v8, 5, v1
    v_bfe_u32 v9, v1, 2, 2
    v_bfe_u32 v10, v1, 4, 1
    v_lshlrev_b32 v10, 5, v10
    v_and_b32 v11, 3, v1
    v_lshl_add_u32 v10, v11, 3, v10
    s_mul_i32 s54, s22, {2*CH}
    v_add_u32 v5, s54, v2
    v_lshl_add_u32 v11, v8, 2, v9
    v_lshl_add_u32 v10, v11, 8, v10
    s_lshl_b32 s54, s23, 1
    v_xor_b32 v11, s54, v9
    v_lshl_add_u32 v6, v11, 6, v10
    v_xor_b32 v11, 1, v11
    v_lshl_add_u32 v7, v11, 6, v10
    s_lshl_b32 s54, s19, 8
    s_lshl_b32 s55, s23, 7
    s_add_u32 s54, s54, s55
    v_lshlrev_b32 v12, 3, v8
    v_add_u32 v12, s54, v12
    s_lshl_b32 s55, s18, 19
    s_lshl_b32 s56, s22, 18
    s_add_u32 s64, s55, s56
    s_lshl_b32 s56, s17, 16
    s_add_u32 s64, s64, s56
    v_and_b32 v11, 31, v1
    v_lshl_add_u32 v13, v11, 11, v12
    v_lshl_add_u32 v14, v8, 3, v13""")
    k("""v_mov_b32 v16, s76
    v_mov_b32 v17, s77
    v_mov_b32 v18, 0
    s_waitcnt vmcnt(0)
    s_barrier
    s_cmp_eq_u32 s16, 0
    s_cbranch_scc0 .g2_nofl
    s_mov_b64 exec, 1
    buffer_store_dwordx2 v[16:17], v18, s[32:35], s70 offen sc1
    s_mov_b64 exec, -1
    .g2_nofl:""")
    for nb in range(2):
        for j in range(4):
            t = 192 + (nb*4+j)*2
            k(f"buffer_load_dwordx2 v[{t}:{t+1}], v13, s[36:39], s64 offen offset:{(32*nb+8*j)*2}")
    for nb in range(2):
        for j in range(4):
            t = 208 + (nb*4+j)*2
            k(f"buffer_load_dwordx2 v[{t}:{t+1}], v12, s[44:47], 0 offen offset:{(32*nb+8*j)*2}")
    for a in range(64, 192): k(f"v_mov_b32 v{a}, 0")
    k(f"""s_lshl_b32 s54, s20, 18
    s_lshl_b32 s55, s16, 14
    s_add_u32 s54, s54, s55
    s_add_u32 s54, s54, {EX - 4096}
    s_lshl_b32 s55, s17, 16
    s_add_u32 s60, s54, s55
    s_cmp_eq_u32 s17, 0
    s_cselect_b32 s57, 3, s17
    s_cmp_eq_u32 s57, 3
    s_cselect_b32 s55, 0, s57
    s_add_u32 s55, s55, 1
    s_cmp_eq_u32 s55, 3
    s_cselect_b32 s56, 0, s55
    s_add_u32 s56, s56, 1""")
    for i in range(3):
        k(f"""s_xor_b32 s58, s{55+i}, s17
        s_lshl_b32 s58, s58, 16
        s_lshl_b32 s59, s{55+i}, 12
        s_add_u32 s58, s58, s59
        s_add_u32 s{61+i}, s54, s58""")
    k(f"""s_lshl_b32 s54, s20, 8
    s_lshl_b32 s55, s16, 6
    s_add_u32 s65, s54, s55
    s_add_u32 s65, s65, {FLAGS + G.FL_F1}
    s_lshl_b32 s54, 1, s17
    s_xor_b32 s66, s54, 15
    s_mov_b32 s67, 0
    s_mov_b32 s68, s54
    s_mov_b32 s69, 0
    v_lshlrev_b32 v15, 3, v1
    s_mov_b32 s58, 0xffff0000
    s_mov_b32 s50, 0
    s_mov_b32 s52, {SLOT}""")
    def reads(st, sub):
        X = 16 + 24*st; W = 32 + 24*st
        xs = [f"ds_read_b128 v[{X+4*mb}:{X+4*mb+3}], v5 offset:{(mb>>1)*CH + 2048 + (mb&1)*2048 + sub*1024}" for mb in range(4)]
        ws = [f"ds_read_b64_tr_b16 v[{W+4*nb+2*q}:{W+4*nb+2*q+1}], v{6+nb} offset:{(2*sub+q)*CH}" for nb in range(2) for q in range(2)]
        return [ws[0] + "\n" + ws[1] + "\n" + xs[0], xs[1] + "\n" + xs[2], xs[3] + "\n" + ws[2] + "\n" + ws[3]]
    def mfmas(st):
        X = 16 + 24*st; W = 32 + 24*st
        return [f"{MF} {vr(64+(nb*4+mb)*16,16)}, {vr(W+4*nb,4)}, {vr(X+4*mb,4)}, {vr(64+(nb*4+mb)*16,16)}" for nb in range(2) for mb in range(4)]
    k("s_barrier")
    k.stamp(1)
    for r in reads(0, 0): k(r)
    k(".g2_loop:")
    k("s_waitcnt lgkmcnt(0)")
    mf = mfmas(0); rd = reads(1, 1)
    for i in range(8):
        k(mf[i])
        if i < 3: k(rd[i])
        if i == 3: k(f"s_add_u32 s50, s50, 1\ns_cmp_eq_u32 s50, {NS}\ns_cselect_b32 s51, {-(NS-1)*SLOT}, s52\ns_cselect_b32 s50, 0, s50")
        if i == 5: k("v_add_u32 v5, s51, v5\nv_add_u32 v6, s51, v6\nv_add_u32 v7, s51, v7")
    k("s_waitcnt lgkmcnt(0)\ns_barrier")
    mf = mfmas(1); rd = reads(0, 0)
    for i in range(8):
        k(mf[i])
        if i < 3: k(rd[i])
        if i == 4: k("s_sub_u32 s21, s21, 1\ns_cmp_lg_u32 s21, 0")
    k("s_cbranch_scc1 .g2_loop")
    k.stamp(2)
    k("s_waitcnt lgkmcnt(0)")
    for mb in range(1, 4):
        k("s_add_u32 s60, s60, 4096")
        for nb in range(2):
            a = 64 + (nb*4+mb)*16; P = 16 + ((mb-1)*2+nb)*8
            for i in range(8): k(f"v_cvt_pk_bf16_f32 v{P+i}, v{a+2*i}, v{a+2*i+1}")
            for g in range(2): k(f"buffer_store_dwordx4 v[{P+4*g}:{P+4*g+3}], v2, s[32:35], s60 offen offset:{nb*2048+g*1024} sc1")
    k("s_waitcnt vmcnt(12)")
    for i in range(16): k(f"v_lshlrev_b32 v{144+2*i}, 16, v{192+i}\nv_and_b32 v{145+2*i}, s58, v{192+i}")
    for i in range(16): k(f"v_lshlrev_b32 v{224+2*i}, 16, v{208+i}\nv_and_b32 v{225+2*i}, s58, v{208+i}")
    own = [64 + i for i in range(16)] + [128 + i for i in range(16)]
    oth = [224 + i for i in range(32)]
    pk = lambda r: f"v[{r}:{r+1}]"
    k("s_cmp_eq_u32 s17, 0\ns_cbranch_scc1 .g2_nob")
    for i in range(0, 32, 2): k(f"v_pk_add_f32 {pk(own[i])}, {pk(own[i])}, {pk(oth[i])}")
    k(".g2_nob:")
    k(f"""v_mov_b32 v8, s76
    v_mov_b32 v9, s77
    s_mov_b32 s54, {f2u(-G.LOG2E)}
    s_mov_b32 s55, s54
    s_mov_b32 s56, 1.0
    s_mov_b32 s57, 1.0
    s_mov_b32 s59, {G.POLL}
    s_waitcnt vmcnt(0)""")
    k.stamp(3)
    k(f"""s_mov_b64 exec, s[68:69]
    buffer_store_dwordx2 v[8:9], v15, s[32:35], s65 offen sc1
    s_mov_b64 exec, s[66:67]
    .g2_poll:
    buffer_load_dwordx2 v[10:11], v15, s[32:35], s65 offen sc1
    s_waitcnt vmcnt(0)
    v_cmp_ne_u64 vcc, s[76:77], v[10:11]
    s_sub_u32 s59, s59, 1
    s_cbranch_vccz .g2_pdone
    s_cmp_lg_u32 s59, 0
    s_cbranch_scc1 .g2_poll
    .g2_pdone:
    s_mov_b64 exec, -1""")
    k.stamp(4)
    for nb in range(2):
        for i in range(3):
            R = 80 + (nb*3+i)*8
            for g in range(2): k(f"buffer_load_dwordx4 v[{R+4*g}:{R+4*g+3}], v2, s[32:35], s{61+i} offen offset:{nb*2048+g*1024} sc1")
    def epi(F, S, kq0):
        for nb in range(2):
            f = F[16*nb]; s = S[16*nb]; T = 16; X = 144 + 16*nb; P = 48 + 8*nb
            for i in range(3):
                R = 80 + (nb*3+i)*8
                k(f"s_waitcnt vmcnt({10 - 2*(nb*3+i) + 2*nb})")
                D = s if (i == 2 and not kq0) else T + 16*(i & 1)
                for j in range(8): k(f"v_lshlrev_b32 v{D+2*j}, 16, v{R+j}\nv_and_b32 v{D+2*j+1}, s58, v{R+j}")
                if D != s:
                    for j in range(8): k(f"v_pk_add_f32 {pk(f+2*j)}, {pk(f+2*j)}, {pk(D+2*j)}")
            if nb == 1: k.stamp(5)
            for j in range(8): k(f"v_pk_mul_f32 {pk(T+2*j)}, {pk(f+2*j)}, s[54:55]")
            for j in range(16): k(f"v_exp_f32 v{T+j}, v{T+j}")
            for j in range(8): k(f"v_pk_mul_f32 {pk(f+2*j)}, {pk(f+2*j)}, {pk(s+2*j)}")
            for j in range(8): k(f"v_pk_add_f32 {pk(T+2*j)}, {pk(T+2*j)}, s[56:57]")
            for j in range(16): k(f"v_rcp_f32 v{T+j}, v{T+j}")
            for j in range(8): k(f"v_pk_fma_f32 {pk(X+2*j)}, {pk(f+2*j)}, {pk(T+2*j)}, {pk(X+2*j)}")
            for j in range(8): k(f"v_cvt_pk_bf16_f32 v{P+j}, v{X+2*j}, v{X+2*j+1}")
            for g in range(2):
                for u in range(2): k(f"v_permlane32_swap_b32 v{P+4*g+u}, v{P+4*g+2+u}")
            for g in range(2):
                k(f"buffer_store_dwordx4 v[{P+4*g}:{P+4*g+3}], v14, s[40:43], s64 offen offset:{(32*nb+16*g)*2}")
        k.prof_end(2, 32)
    k("s_cmp_eq_u32 s17, 0\ns_cbranch_scc1 .g2_epi0")
    epi(own, oth, False)
    k("s_endpgm")
    k(".g2_epi0:")
    epi(oth, own, True)
    return k
```

```python
import sys, struct
sys.path.insert(0, "dev")
from asmlib import *
import haz
MB = 1 << 20
XN, A3, KVP, ZP, FLAGS, F1, GG = 1*MB, 5*MB, 24*MB, 26*MB, 27*MB, 32*MB, 40*MB
A3S = 288 * 1024
FL_K2, FL_F1, FL_G = 0, 4096, 20480
STATS, CSUM = 28*MB, 28*MB + 65536
WSZ = 0x10000000
def f2u(x): return "0x%08x" % struct.unpack("<I", struct.pack("<f", x))[0]
LOG2E = 1.4426950408889634
POLL = 1 << 14
PF3 = True
import os
EXP = os.environ.get('EXP','')

def srd(k, d, lo, hi, nrec, off=None):
    if off is None:
        k(f"s_mov_b32 s{d}, s{lo}\ns_mov_b32 s{d+1}, s{hi}")
    else:
        k(f"s_add_u32 s{d}, s{lo}, {off}\ns_addc_u32 s{d+1}, s{hi}, 0")
    k(f"s_mov_b32 s{d+2}, {nrec}\ns_mov_b32 s{d+3}, 0x20000")

def xsum_half(k, a, t, op="v_add_f32"):
    k(f"v_mov_b32 v{t}, v{a}\nv_permlane32_swap_b32 v{a}, v{t}\n{op} v{a}, v{a}, v{t}")

def rnd_bf16(k, a):
    k(f"v_cvt_pk_bf16_f32 v{a}, v{a}, v{a}\nv_lshlrev_b32 v{a}, 16, v{a}")

def k1():
    k = Kern("ln_kernel", 256, 512, lds=512, nvgpr=64, nsgpr=32)
    k("s_load_dwordx2 s[4:5], s[0:1], 0\ns_load_dwordx2 s[6:7], s[0:1], 88")
    k("s_cmp_ge_u32 s2, 256\ns_cbranch_scc1 .ln_end")
    for i in range(8): k.stamp(i)
    k("""v_and_b32 v1, 7, v0
    v_lshrrev_b32 v2, 6, v0
    v_bfe_u32 v3, v0, 3, 3
    v_lshl_add_u32 v3, v2, 4, v3
    s_lshl_b32 s3, s2, 14
    v_lshlrev_b32 v4, 11, v1
    v_lshl_add_u32 v4, v3, 4, v4
    v_add_u32 v4, s3, v4""")
    k("s_waitcnt lgkmcnt(0)")
    srd(k, 8, 4, 5, 4*MB)
    srd(k, 12, 6, 7, WSZ)
    k("buffer_load_dwordx4 v[8:11], v4, s[8:11], 0 offen\nbuffer_load_dwordx4 v[12:15], v4, s[8:11], 0 offen offset:128")
    k(f"""s_lshr_b32 s16, s2, 2
    s_lshl_b32 s16, s16, 16
    s_and_b32 s17, s2, 3
    s_lshl_b32 s17, s17, 7
    s_add_u32 s16, s16, s17
    s_add_u32 s16, s16, {XN}
    v_lshrrev_b32 v5, 1, v3
    v_lshlrev_b32 v5, 10, v5
    v_and_b32 v6, 1, v3
    v_lshl_add_u32 v5, v6, 9, v5
    v_lshl_add_u32 v5, v1, 4, v5
    v_add_u32 v5, s16, v5
    s_mov_b32 s18, 4096
    v_lshlrev_b32 v6, 6, v1
    v_lshl_add_u32 v7, v2, 3, v6""")
    k(f"""v_cmp_gt_u32 vcc, 64, v0
    s_lshl_b32 s19, s2, 8
    s_add_u32 s19, s19, {FLAGS}
    v_lshlrev_b32 v40, 2, v0
    v_mov_b32 v41, 0
    s_and_saveexec_b64 s[20:21], vcc
    s_cbranch_execz .ln_nz
    buffer_store_dword v41, v40, s[12:15], s19 offen sc1
    .ln_nz:
    s_mov_b64 exec, s[20:21]""")
    k("s_mov_b32 s22, 0xffff0000")
    k("s_waitcnt vmcnt(0)")
    for i in range(8):
        k(f"v_lshlrev_b32 v{16+2*i}, 16, v{8+i}\nv_and_b32 v{17+2*i}, s22, v{8+i}")
    def red3(a, t):
        k(f"v_add_f32_dpp v{a}, v{a}, v{a} row_ror:8 row_mask:0xf bank_mask:0xf")
        k(f"v_mov_b32 v{t}, v{a}\nv_permlane16_swap_b32 v{a}, v{t}\nv_add_f32 v{a}, v{a}, v{t}")
        xsum_half(k, a, t)
    for i in range(4):
        k(f"v_add_f32 v{32+i}, v{16+4*i}, v{17+4*i}\nv_add_f32 v{36+i}, v{18+4*i}, v{19+4*i}")
    for i in range(4): k(f"v_add_f32 v{32+i}, v{32+i}, v{36+i}")
    k("v_add_f32 v32, v32, v33\nv_add_f32 v34, v34, v35\nv_add_f32 v32, v32, v34")
    red3(32, 33)
    k(f"v_mul_f32 v32, {f2u(1/128)}, v32")
    for i in range(16): k(f"v_sub_f32 v{40+i}, v{16+i}, v32")
    for i in range(4): k(f"v_mul_f32 v{36+i}, v{40+i}, v{40+i}")
    for i in range(4, 16): k(f"v_fmac_f32 v{36+(i&3)}, v{40+i}, v{40+i}")
    k("v_add_f32 v36, v36, v37\nv_add_f32 v38, v38, v39\nv_add_f32 v33, v36, v38")
    red3(33, 34)
    k("ds_write_b64 v7, v[32:33]\ns_waitcnt lgkmcnt(0)\ns_barrier")
    for i in range(4): k(f"ds_read_b128 v[{40+4*i}:{43+4*i}], v6 offset:{16*i}")
    k("s_waitcnt lgkmcnt(0)")
    k("""v_add_f32 v32, v40, v42
    v_add_f32 v33, v44, v46
    v_add_f32 v34, v48, v50
    v_add_f32 v35, v52, v54
    v_add_f32 v36, v41, v43
    v_add_f32 v37, v45, v47
    v_add_f32 v38, v49, v51
    v_add_f32 v39, v53, v55
    v_add_f32 v32, v32, v33
    v_add_f32 v34, v34, v35
    v_add_f32 v36, v36, v37
    v_add_f32 v38, v38, v39
    v_add_f32 v32, v32, v34
    v_add_f32 v36, v36, v38
    v_mul_f32 v32, 0x3e000000, v32""")
    for i in range(8): k(f"v_sub_f32 v{40+2*i}, v{40+2*i}, v32")
    k("v_mul_f32 v33, v40, v40\nv_mul_f32 v34, v42, v42")
    for i in range(2, 8): k(f"v_fmac_f32 v{33+(i&1)}, v{40+2*i}, v{40+2*i}")
    k(f"""v_add_f32 v33, v33, v34
    v_fmac_f32 v36, {f2u(128.0)}, v33
    v_mul_f32 v36, {f2u(1/1024)}, v36""")
    rnd_bf16(k, 32); rnd_bf16(k, 36)
    k(f"v_add_f32 v36, {f2u(1e-5)}, v36"); rnd_bf16(k, 36)
    k("v_sqrt_f32 v36, v36"); rnd_bf16(k, 36)
    k("v_rcp_f32 v36, v36")
    for i in range(16): k(f"v_sub_f32 v{16+i}, v{16+i}, v32")
    for i in range(8): k(f"v_cvt_pk_bf16_f32 v{8+i}, v{16+2*i}, v{17+2*i}")
    for i in range(8): k(f"v_lshlrev_b32 v{16+2*i}, 16, v{8+i}\nv_and_b32 v{17+2*i}, s22, v{8+i}")
    for i in range(16): k(f"v_mul_f32 v{16+i}, v{16+i}, v36")
    for i in range(8): k(f"v_cvt_pk_bf16_f32 v{8+i}, v{16+2*i}, v{17+2*i}")
    k("buffer_store_dwordx4 v[8:11], v5, s[12:15], 0 offen\nbuffer_store_dwordx4 v[12:15], v5, s[12:15], s18 offen")
    k.prof_end(0, 12)
    k(".ln_end:")
    return k

def interleave(mf, others, first=0):
    out = []; n = len(mf); m = len(others); o = 0
    for i, x in enumerate(mf):
        out.append(x)
        if i >= first:
            tgt = min(m, -(-m * (i - first + 1) // max(1, (n - first - 1)))) if n - first - 1 > 0 else m
            while o < tgt: out.append(others[o]); o += 1
    out += others[o:]
    return "\n".join(out)

MF = "v_mfma_f32_32x32x16_bf16"
SLOT2, CH2, NS2 = 30720, 3840, 5
L_WPHI = 153600
L_T, L_R, L_ZL, L_KF, L_ZB = 0, 69632, 135168, 147456, 155648
L_AF, L_BF, L_RS = 157696, 159744, 161792
RPG = int(os.environ.get('RPG', 2)); DOFF = int(os.environ.get('DOFF', 0))
XST = 2048 if 'xlin' in EXP else 64
def k2():
    global PF3
    if 'nopf' in EXP: PF3 = False
    k = Kern("g1_kernel", 256, 512, lds=163840, nvgpr=256, nsgpr=80)
    k("s_load_dwordx4 s[4:7], s[0:1], 8\ns_load_dwordx4 s[8:11], s[0:1], 40\ns_load_dwordx4 s[72:75], s[0:1], 80\ns_load_dwordx2 s[66:67], s[0:1], 0\ns_load_dwordx2 s[62:63], s[0:1], 24\ns_load_dwordx2 s[64:65], s[0:1], 56")
    k("s_cmp_ge_u32 s2, 256\ns_cbranch_scc1 .g1_end")
    for i in range(8): k.stamp(i)
    k("""v_lshrrev_b32 v2, 6, v0
    v_and_b32 v1, 63, v0
    s_and_b32 s44, s2, 7
    s_lshr_b32 s45, s2, 3
    v_readfirstlane_b32 s14, v2
    s_lshr_b32 s19, s45, 4
    s_and_b32 s17, s45, 7
    s_bfe_u32 s18, s45, 0x10003
    s_lshl_b32 s44, s44, 1
    s_add_u32 s18, s18, s44
    s_and_b32 s15, s14, 3
    s_lshr_b32 s16, s14, 2""")
    k("""v_lshrrev_b32 v7, 5, v1
    v_bfe_u32 v8, v1, 2, 2
    v_bfe_u32 v9, v1, 4, 1
    v_lshlrev_b32 v9, 5, v9
    v_and_b32 v10, 3, v1
    v_lshl_add_u32 v9, v10, 3, v9
    v_cmp_le_u32 vcc, 28, v1
    v_lshlrev_b32 v2, 4, v1
    s_mul_i32 s39, s14, 3840
    s_mul_i32 s44, s15, 7680
    v_cndmask_b32 v10, 0, 1, vcc
    v_mul_u32_u24 v11, 28, v10
    v_sub_u32 v11, v1, v11
    v_and_b32 v12, 31, v1
    v_bfe_u32 v13, v1, 2, 2
    v_xor_b32 v13, v13, v7
    v_lshlrev_b32 v13, 4, v13
    v_lshl_add_u32 v13, v12, 6, v13
    v_add_u32 v5, s44, v13
    v_xor_b32 v243, 32, v5
    v_lshrrev_b32 v12, 2, v1
    v_lshrrev_b32 v13, 4, v1
    v_xor_b32 v13, v13, v1
    v_and_b32 v13, 3, v13
    v_lshlrev_b32 v13, 4, v13
    v_lshl_add_u32 v244, v12, 11, v13
    v_add_u32 v245, 31744, v244
    v_mov_b32 v248, 0
    v_mov_b32 v254, 0
    v_lshlrev_b32 v246, 5, v1
    s_mov_b32 s56, 0x3f803f80""")
    k(f"""v_mul_u32_u24 v6, 7680, v7
    v_mul_u32_u24 v12, 448, v8
    v_add3_u32 v6, v6, v12, v9
    s_lshl_b32 s44, s14, 2
    v_add_u32 v10, s44, v10""")
    if 'xlin' in EXP: k("v_lshlrev_b32 v244, 4, v1\nv_mov_b32 v245, v244")
    k("s_waitcnt lgkmcnt(0)")
    k(f"""s_lshl_b32 s44, s17, 3
    s_add_u32 s44, s44, s14
    s_lshl_b32 s44, s44, 16""")
    srd(k, 24, 66, 67, 65536, "s44")
    srd(k, 32, 66, 67, 4*MB)
    k("""s_lshl_b32 s44, s2, 3
    s_add_u32 s57, s44, s14
    s_lshl_b32 s44, s57, 11
    buffer_load_dwordx4 v[192:195], v246, s[32:35], s44 offen
    buffer_load_dwordx4 v[196:199], v246, s[32:35], s44 offen offset:16""")
    srd(k, 28, 74, 75, WSZ)
    srd(k, 68, 72, 73, 256)
    k(f"""s_or_b32 s44, s14, s2
    s_cmp_eq_u32 s44, 0
    s_cbranch_scc0 .g1_nz
    s_memrealtime s[44:45]
    s_waitcnt lgkmcnt(0)
    v_mov_b32 v12, s44
    v_mov_b32 v13, s45
    s_mov_b64 exec, 1
    buffer_store_dwordx2 v[12:13], v254, s[68:71], 0 offen sc1
    s_mov_b64 exec, -1
    .g1_nz:""")
    k("s_cmp_eq_u32 s17, 0\ns_cselect_b32 s36, 256, 0\ns_mov_b32 s59, -1\ns_mov_b32 s78, 0\ns_mov_b32 s79, 0\ns_mov_b32 s40, 4\ns_mov_b32 s58, 0\ns_mov_b32 s46, 0\ns_mov_b32 s47, 0xffff0000")
    k(f"""s_lshl_b32 s44, s19, 4
    s_add_u32 s44, s44, s18
    s_mul_i32 s60, s44, 7168
    s_lshl_b32 s45, s16, 12
    s_add_u32 s60, s60, s45
    s_add_u32 s60, s60, {CSUM}
    s_lshl_b32 s61, s17, 11
    s_lshl_b32 s45, s15, 9
    s_add_u32 s61, s61, s45
    s_add_u32 s61, s61, {STATS}""")
    k(f"""s_lshl_b32 s44, s17, 3
    s_lshl_b32 s45, s15, 1
    s_add_u32 s44, s44, s45
    s_mul_i32 s48, s44, {A3S}
    s_add_u32 s48, s48, {A3}""")
    k("s_cmp_eq_u32 s19, 0\ns_cbranch_scc1 .g1_qkv")

    def dma(k):
        return ["s_mov_b32 m0, s39\ns_mov_b64 exec, s[42:43]\nbuffer_load_dwordx4 v3, s[20:23], s37 offen lds\nbuffer_load_dwordx4 v4, s[20:23], s37 offen offset:896 lds\ns_mov_b64 exec, -1",
                "s_add_u32 m0, s39, 1792\ns_add_u32 s37, s37, s38\nbuffer_load_dwordx4 v244, s[24:27], s36 offen lds\nbuffer_load_dwordx4 v245, s[24:27], s36 offen offset:1024 lds\ns_add_u32 s36, s36, 64\ns_cmp_eq_u32 s36, s59\ns_cselect_b32 s36, s78, s36\ns_cselect_b32 s37, s79, s37\ns_cmp_eq_u32 s36, 2048\ns_cselect_b32 s36, 0x100000, s36\ns_cselect_b32 s37, 0x10000000, s37"]
    def adv_w():
        return f"s_add_u32 s39, s39, {SLOT2}\ns_add_u32 s46, s46, 1\ns_cmp_eq_u32 s46, {NS2}\ns_cselect_b32 s41, {-(NS2-1)*SLOT2}, s49\ns_cselect_b32 s46, 0, s46\ns_cselect_b32 s44, {NS2*SLOT2}, 0\ns_sub_u32 s39, s39, s44"
    def reads(st, sub, woffs):
        X = 16 + 24*st; W = 24 + 24*st
        r = []
        xa = "v243" if sub else "v5"
        r.append(f"ds_read_b128 v[{X}:{X+3}], {xa} offset:1792")
        for nb, wo in enumerate(woffs):
            for q in range(2):
                r.append(f"ds_read_b64_tr_b16 v[{W+4*nb+2*q}:{W+4*nb+2*q+1}], v6 offset:{(4*sub+q)*CH2+wo}")
            if nb == 0: r.append(f"ds_read_b128 v[{X+4}:{X+7}], {xa} offset:{CH2+1792}")
        return r
    def mfmas(st, nnb, swap=()):
        X = 16 + 24*st; W = 24 + 24*st
        r = []
        for nb in range(nnb):
            for mb in range(2):
                a = 64 + (nb*2+mb)*16
                wf, xf = vr(W+4*nb, 4), vr(X+4*mb, 4)
                if nb in swap: wf, xf = xf, wf
                r.append(f"{MF} {vr(a,16)}, {wf}, {xf}, {vr(a,16)}")
        return r
    def prologue_dmas(nacc):
        k(f"s_mov_b32 s49, {SLOT2}\ns_mov_b32 s12, s39\ns_add_u32 s13, s39, {NS2*SLOT2}")
        z = [f"v_mov_b32 v{a}, 0" for a in range(64, 64 + nacc)]
        k2_ = Kern("tmp_kernel", 1, 1); rowstats(k2_); st = [x.strip() for x in k2_.lines]
        for s in range(4):
            for gi, g in enumerate(dma4()):
                k(g)
                q = 4*s + gi; k("\n".join(z[q*nacc//16:(q+1)*nacc//16]))
        k("s_waitcnt vmcnt(16)")
        k("\n".join(st[:-4]))
        k("""s_lshl_b32 s36, s17, 8
        s_lshr_b32 s44, s38, 6
        s_mul_i32 s37, s36, s44
        s_add_u32 s59, s36, 256
        s_cmp_le_u32 s17, 1
        s_cselect_b32 s78, 2, 1
        s_lshl_b32 s78, s78, 8
        s_mul_i32 s79, s78, s44""")
        k("\n".join(st[-4:]))
    def fifth():
        for g in dma4(): k(g)
    def dots(st, cnb):
        if cnb is None: return []
        W = 24 + 24*st + 4*cnb
        return [f"v_dot2c_f32_bf16 v248, s56, v{W+t}" for t in range(4)]
    def dma4():
        return ["s_mov_b32 m0, s39\ns_mov_b64 exec, s[42:43]\nbuffer_load_dwordx4 v3, s[20:23], s37 offen lds\ns_mov_b64 exec, -1",
                "s_mov_b64 exec, s[42:43]\nbuffer_load_dwordx4 v4, s[20:23], s37 offen offset:896 lds\ns_mov_b64 exec, -1\ns_add_u32 m0, s39, 1792\ns_add_u32 s37, s37, s38",
                f"buffer_load_dwordx4 v244, s[24:27], s36 offen lds\ns_add_u32 s39, s39, {SLOT2}\ns_cmp_eq_u32 s39, s13\ns_cselect_b32 s39, s12, s39",
                "buffer_load_dwordx4 v245, s[24:27], s36 offen offset:1024 lds\ns_add_u32 s36, s36, 64\ns_cmp_eq_u32 s36, s59\ns_cselect_b32 s36, s78, s36\ns_cselect_b32 s37, s79, s37\ns_cmp_eq_u32 s36, 2048\ns_cselect_b32 s36, 0x100000, s36\ns_cselect_b32 s37, 0x10000000, s37"]
    def place(mf, rd, dm, dt):
        n = len(mf); slots = [[] for _ in range(n)]
        per = RPG
        for i, r in enumerate(rd): slots[min(n-1, i // per)].append(r)
        first = max(0, n - len(dm) - DOFF)
        for i, d in enumerate(dm): slots[min(n-1, first + i)].append(d)
        for i, d in enumerate(dt): slots[min(n-1, n - len(dt) + i)].append(d)
        return "\n".join(x for i in range(n) for x in [mf[i]] + slots[i])
    def mainloop(tag, woffs, swap, cnb, early):
        nnb = len(woffs)
        rdadv = f"s_add_u32 s46, s46, 1\ns_cmp_eq_u32 s46, {NS2}\ns_cselect_b32 s41, {-(NS2-1)*SLOT2}, s49\ns_cselect_b32 s46, 0, s46"
        k(f".g1_loop{tag}:")
        k("s_waitcnt lgkmcnt(0)")
        k(place(mfmas(0, nnb, swap), reads(1, 1, woffs) + [rdadv + "\nv_add_u32 v5, s41, v5\nv_add_u32 v6, s41, v6\nv_add_u32 v243, s41, v243"], dma4() if early else [], dots(0, cnb)))
        k("s_sub_u32 s40, s40, 1\ns_waitcnt vmcnt(12) lgkmcnt(0)\ns_barrier")
        k(place(mfmas(1, nnb, swap), reads(0, 0, woffs), [] if early else dma4(), dots(1, cnb)))
        k(f"s_cmp_lg_u32 s40, 0\ns_cbranch_scc1 .g1_loop{tag}")
    def rowstats(k):
        def red(a, t):
            for sh in (8, 4, 2, 1): k(f"v_add_f32_dpp v{a}, v{a}, v{a} row_ror:{sh} row_mask:0xf bank_mask:0xf")
            k(f"v_mov_b32 v{t}, v{a}\nv_permlane16_swap_b32 v{a}, v{t}\nv_add_f32 v{a}, v{a}, v{t}")
            xsum_half(k, a, t)
        for i in range(8): k(f"v_lshlrev_b32 v{200+2*i}, 16, v{192+i}\nv_and_b32 v{201+2*i}, s47, v{192+i}")
        for i in range(4): k(f"v_add_f32 v{216+i}, v{200+4*i}, v{201+4*i}\nv_add_f32 v{220+i}, v{202+4*i}, v{203+4*i}")
        for i in range(4): k(f"v_add_f32 v{216+i}, v{216+i}, v{220+i}")
        k("v_add_f32 v216, v216, v217\nv_add_f32 v218, v218, v219\nv_add_f32 v216, v216, v218")
        red(216, 217)
        k(f"v_mul_f32 v216, {f2u(1/1024)}, v216")
        for i in range(16): k(f"v_sub_f32 v{200+i}, v{200+i}, v216")
        for i in range(4): k(f"v_mul_f32 v{220+i}, v{200+i}, v{200+i}")
        for i in range(4, 16): k(f"v_fmac_f32 v{220+(i&3)}, v{200+i}, v{200+i}")
        k("v_add_f32 v220, v220, v221\nv_add_f32 v222, v222, v223\nv_add_f32 v217, v220, v222")
        red(217, 218)
        k(f"v_mul_f32 v217, {f2u(1/1024)}, v217")
        rnd_bf16(k, 217)
        k(f"v_add_f32 v217, {f2u(1e-5)}, v217\nv_sub_f32 v216, 0, v216"); rnd_bf16(k, 217)
        k(f"""v_sqrt_f32 v217, v217
        s_lshl_b32 s57, s57, 3
        s_add_u32 s57, s57, {STATS}
        v_cvt_pk_bf16_f32 v216, v216, v217
        v_and_b32 v217, s47, v216
        v_rcp_f32 v217, v217
        s_mov_b64 exec, 1
        buffer_store_dwordx2 v[216:217], v254, s[28:31], s57 offen sc1
        s_mov_b64 exec, -1""")
    def loops(tag, woffs, swap, early, pf=None, late=None):
        nnb = len(woffs)
        L = lambda x: f".g1_{x}{tag}"
        for r in reads(0, 0, woffs): k(r)
        if not early: fifth()
        k(f"s_branch .g1_loop{tag}")
        for mw in range(nnb):
            mainloop(f"{tag}d{mw}", woffs, swap, mw, early)
            k(f"s_branch {L('pub')}")
        mainloop(tag, woffs, swap, None, early)
        k(f"""s_add_u32 s58, s58, 1
        s_mov_b32 s40, 4
        s_cmp_eq_u32 s58, 2
        s_cbranch_scc1 .g1_loop{tag}
        s_cmp_eq_u32 s58, 3
        s_cbranch_scc1 {L('p2')}
        s_cmp_eq_u32 s58, 4
        s_cbranch_scc1 {L('p3')}
        s_cmp_eq_u32 s58, 5
        s_cbranch_scc1 {L('p4')}
        s_sub_u32 s78, s59, 0
        s_sub_u32 s59, s59, 256
        s_lshr_b32 s44, s38, 6
        s_mul_i32 s79, s78, s44""")
        if 'ph' in EXP: k.stamp(3)
        for mw in range(nnb): k(f"s_cmp_eq_u32 s15, {mw}\ns_cbranch_scc1 .g1_loop{tag}d{mw}")
        k(f"s_branch .g1_loop{tag}\n{L('p2')}:")
        if 'ph' in EXP: k.stamp(4)
        k("s_mov_b32 s40, 12")
        if pf: pf()
        k(f"""s_cmp_eq_u32 s14, 0
        s_cbranch_scc0 .g1_loop{tag}
        v_mov_b32 v248, 1
        s_mov_b64 exec, 1
        buffer_atomic_add v248, v254, s[68:71], 0 offen offset:8 sc1
        s_mov_b64 exec, -1
        s_branch .g1_loop{tag}""")
        k(f"{L('pub')}:")
        xsum_half(k, 248, 249)
        k(f"""v_and_b32 v249, 31, v1
        v_lshlrev_b32 v249, 5, v249
        s_lshl_b32 s44, s15, 10
        s_lshl_b32 s45, s17, 2
        s_add_u32 s44, s44, s45
        s_add_u32 s44, s44, s60
        s_mov_b32 exec_hi, 0
        buffer_store_dword v248, v249, s[28:31], s44 offen sc1
        s_mov_b64 exec, -1
        s_mov_b32 s58, 2
        s_mov_b32 s40, 4
        s_branch .g1_loop{tag}""")
        k(f"{L('p3')}:")
        if 'ph' in EXP: k.stamp(5)
        k(f"""buffer_load_dwordx4 v[216:219], v254, s[68:71], 0 offen
        s_branch .g1_loop{tag}
        {L('p4')}:""")
        if 'ph' in EXP: k.stamp(6)
        k(f"""
        s_mov_b32 s44, {POLL}
        {L('p4l')}:
        v_readfirstlane_b32 s45, v218
        v_readfirstlane_b32 s76, v216
        v_readfirstlane_b32 s77, v217
        s_cmp_eq_u32 s45, 256
        s_cbranch_scc1 {L('p4ok')}
        buffer_load_dwordx4 v[216:219], v254, s[68:71], 0 offen sc1
        s_sub_u32 s44, s44, 1
        s_waitcnt vmcnt(0)
        s_cmp_lg_u32 s44, 0
        s_cbranch_scc1 {L('p4l')}
        {L('p4ok')}:
        v_and_b32 v249, 31, v1
        v_lshlrev_b32 v248, 3, v249
        v_lshlrev_b32 v249, 5, v249
        v_lshl_add_u32 v249, v7, 4, v249
        buffer_load_dwordx2 v[240:241], v248, s[28:31], s61 offen sc1
        buffer_load_dwordx2 v[246:247], v248, s[28:31], s61 offen offset:256 sc1""")
        for nb in range(nnb): k(f"buffer_load_dwordx4 v[{224+4*nb}:{227+4*nb}], v249, s[28:31], s60 offen offset:{1024*nb} sc1")
        n0 = len(k.lines)
        if late: late()
        nx = 2 + nnb + sum('buffer_' in x for x in k.lines[n0:])
        rdadv = f"s_add_u32 s46, s46, 1\ns_cmp_eq_u32 s46, {NS2}\ns_cselect_b32 s41, {-(NS2-1)*SLOT2}, s49\ns_cselect_b32 s46, 0, s46"
        for i in range(4):
            k("s_waitcnt lgkmcnt(0)")
            k(place(mfmas(0, nnb, swap), reads(1, 1, woffs) + [rdadv + "\nv_add_u32 v5, s41, v5\nv_add_u32 v6, s41, v6\nv_add_u32 v243, s41, v243"], [], []))
            vm = f"vmcnt({(8 if early else 12) - 4*i + nx}) " if i < 3 else ""
            k(f"s_waitcnt {vm}lgkmcnt(0)\ns_barrier")
            k(place(mfmas(1, nnb, swap), reads(0, 0, woffs) if i < 3 else [], [], []))
        k(f"{L('done')}:")
    def fixup(nnb, swap, b1, extra=None):
        k("s_waitcnt vmcnt(0) lgkmcnt(0)")
        if extra: extra()
        for i in (18, 19, 22, 23): k(f"v_mov_b32 v{i}, 0")
        k("""v_mov_b32 v56, v241
        v_mov_b32 v57, v241
        v_mov_b32 v58, v247
        v_mov_b32 v59, v247
        v_cmp_gt_u32 vcc, 32, v1
        s_mov_b32 s44, 0x01000100
        v_perm_b32 v16, v240, v240, s44
        v_perm_b32 v20, v246, v246, s44
        v_cndmask_b32 v17, 0, v240, vcc
        v_cndmask_b32 v21, 0, v246, vcc
        v_cndmask_b32 v16, 0, v16, vcc
        v_cndmask_b32 v20, 0, v20, vcc""")
        for nb in range(nnb):
            c = 224 + 4*nb; a = 24 + 4*nb
            k(f"v_add_f32 v{c}, v{c}, v{c+1}\nv_add_f32 v{c+2}, v{c+2}, v{c+3}\nv_mov_b32 v{a+2}, 0\nv_add_f32 v{c}, v{c}, v{c+2}\nv_mov_b32 v{a+3}, 0")
        for nb in range(nnb): k(f"v_mov_b32 v{225+4*nb}, v{224+4*nb}")
        for nb in range(nnb): k(f"v_permlane32_swap_b32 v{224+4*nb}, v{225+4*nb}")
        for nb in range(nnb): k(f"v_add_f32 v{224+4*nb}, v{224+4*nb}, v{225+4*nb}")
        for nb in range(nnb): k(f"v_cvt_pk_bf16_f32 v{225+4*nb}, v{224+4*nb}, v{224+4*nb}")
        for nb in range(nnb): k(f"v_lshlrev_b32 v{225+4*nb}, 16, v{225+4*nb}")
        for nb in range(nnb): k(f"v_sub_f32 v{224+4*nb}, v{224+4*nb}, v{225+4*nb}")
        for nb in range(nnb): k(f"v_cvt_pk_bf16_f32 v{226+4*nb}, v{224+4*nb}, v{224+4*nb}")
        for nb in range(nnb): k(f"v_lshlrev_b32 v{226+4*nb}, 16, v{226+4*nb}")
        for nb in range(nnb): k(f"v_sub_f32 v{224+4*nb}, v{224+4*nb}, v{226+4*nb}")
        for nb in range(nnb):
            k(f"v_cvt_pk_bf16_f32 v{24+4*nb}, v{225+4*nb}, v{226+4*nb}")
            if b1: k(f"v_lshlrev_b32 v{250+nb}, 16, v{250+nb}\nv_cvt_pk_bf16_f32 v{25+4*nb}, v{224+4*nb}, v{250+nb}")
            else: k(f"v_cvt_pk_bf16_f32 v{25+4*nb}, v{224+4*nb}, 0")
        for x in mfmas(0, nnb, swap): k(x)

    def wfill(tag):
        from gen3 import SLOT, CH, NS
        k(f"""s_and_b32 s39, s2, 3
        s_sub_u32 s36, s39, 1
        s_mul_i32 s36, s36, {37 << 16}""")
        srd(k, 24, 64, 65, 3584*2048)
        k(f"""s_mul_i32 s40, s39, 5
        s_lshl_b32 s40, 0x3f, s40
        s_lshr_b32 s40, s40, 5
        s_mov_b32 s41, 0
        s_mov_b32 s38, {FLAGS + FL_G + 1024}
        s_cmp_eq_u32 s39, 0
        s_cbranch_scc0 .g1_wf{tag}
        s_mov_b32 s36, 0
        s_mov_b32 s40, 0xffff
        s_mov_b32 s38, {FLAGS + FL_G}""")
        srd(k, 24, 62, 63, 2*MB)
        k(f""".g1_wf{tag}:
        v_lshrrev_b32 v5, 4, v1
        v_bfe_u32 v6, v1, 2, 2
        v_xor_b32 v6, v6, v5
        v_lshlrev_b32 v3, 11, v5
        v_lshl_add_u32 v3, v6, 6, v3
        v_and_b32 v6, 3, v1
        v_lshl_add_u32 v3, v6, 4, v3
        s_lshl_b32 s37, s15, 14
        s_lshr_b32 s39, s2, 5
        s_lshl_b32 s39, s39, 8
        s_add_u32 s37, s37, s39
        v_add_u32 v3, s37, v3
        v_add_u32 v4, 7168, v3
        s_mul_i32 s37, s15, {CH}
        s_bfe_u32 s39, s2, 0x10002
        s_lshl_b32 s39, s39, 9
        s_add_u32 s38, s38, s39
        s_bfe_u32 s39, s2, 0x20003
        s_lshl_b32 s39, s39, 7
        s_add_u32 s38, s38, s39
        v_lshlrev_b32 v5, 3, v1
        v_mov_b32 v10, 0
        v_mov_b32 v11, 0""")
        for s_ in range(NS):
            k(f"""s_add_u32 m0, s37, {s_*SLOT}
            s_nop 0
            buffer_load_dwordx4 v3, s[24:27], s36 offen lds
            buffer_load_dwordx4 v4, s[24:27], s36 offen offset:1024 lds
            s_add_u32 s36, s36, 65536""")
        if 'l2pf' in EXP:
            k(f"""s_bfe_u32 s39, s2, 0x20003
            s_lshl_b32 s39, s39, 2
            s_add_u32 s39, s39, s15
            s_lshl_b32 s39, s39, 17
            v_lshrrev_b32 v8, 2, v1
            v_lshlrev_b32 v8, 11, v8
            v_and_b32 v6, 3, v1
            v_lshl_add_u32 v8, v6, 6, v8
            v_add_u32 v8, s39, v8
            s_lshr_b32 s39, s2, 5
            s_lshl_b32 s39, s39, 8
            s_add_u32 s39, s39, s36""")
            for i in range(4):
                k(f"""buffer_load_dword v9, v8, s[24:27], s39 offen
                s_add_u32 s39, s39, 32768""")
    srd(k, 20, 8, 9, 1024*7168)
    k(f"""s_mov_b32 s38, {32*7168}
    s_mul_i32 s37, s36, {7168//2}
    s_mov_b32 s42, -1
    s_mov_b32 s43, 0x00ffffff
    s_mul_i32 s44, s18, 448
    v_mul_u32_u24 v3, 7168, v10
    v_lshl_add_u32 v3, v11, 4, v3
    v_add_u32 v3, s44, v3
    v_add_u32 v4, {2*7168-896}, v3
    s_lshl_b32 s45, s16, 8
    s_add_u32 s44, s44, s45
    v_add_u32 v6, s45, v6
    v_and_b32 v12, 31, v1
    v_lshl_add_u32 v12, v12, 1, s44""")
    prologue_dmas(128)
    srd(k, 32, 10, 11, 3584*2)
    k(f"""s_mul_i32 s44, s18, 14
    s_lshl_b32 s45, s16, 3
    s_add_u32 s44, s44, s45
    s_add_u32 s44, s44, 64
    s_lshl_b32 s44, s44, 10
    s_add_u32 s48, s48, s44
    s_add_u32 s50, s48, {A3S}
    s_mov_b32 s51, {f2u(-2.3022081)}
    s_mov_b32 s52, {f2u(-0.10294324)}""")
    k("s_waitcnt vmcnt(13)\ns_barrier")
    k.stamp(1)
    k("s_cmp_eq_u32 s16, 0\ns_cbranch_scc0 .g1_f3")
    pk = lambda r: f"v[{r}:{r+1}]"
    def gelu_tile(nb, mb):
        a = 64 + (nb*2+mb)*16
        T = 192 + 16*((nb*2+mb) & 1)
        P = 224 + 8*((nb*2+mb) & 1)
        for i in range(0, 16, 2): k(f"v_pk_mul_f32 {pk(a+i)}, {pk(a+i)}, {pk(56+2*mb)}")
        for i in range(0, 16, 2): k(f"v_pk_mul_f32 {pk(T+i)}, {pk(a+i)}, {pk(a+i)}")
        for i in range(0, 16, 2): k(f"v_pk_fma_f32 {pk(T+i)}, {pk(T+i)}, s[52:53], v[60:61]")
        for i in range(0, 16, 2): k(f"v_pk_mul_f32 {pk(T+i)}, {pk(T+i)}, {pk(a+i)}")
        for i in range(16): k(f"v_exp_f32 v{T+i}, v{T+i}")
        for i in range(0, 16, 2): k(f"v_pk_add_f32 {pk(T+i)}, {pk(T+i)}, s[54:55]")
        for i in range(16): k(f"v_rcp_f32 v{T+i}, v{T+i}")
        for i in range(0, 16, 2): k(f"v_pk_mul_f32 {pk(T+i)}, {pk(T+i)}, {pk(a+i)}")
        for i in range(8): k(f"v_cvt_pk_bf16_f32 v{P+i}, v{T+2*i}, v{T+2*i+1}")
        for ks in range(2):
            off = (2*nb+ks)*1024
            va = "v2" if off < 4096 else "v14"
            k(f"buffer_store_dwordx4 v[{P+4*ks}:{P+4*ks+3}], {va}, s[28:31], s{48+2*mb} offen offset:{off & 4095} sc1")
    for tag, nnb in (("f4", 4), ("f3", 3)):
        if tag == "f3": k(".g1_f3:")
        woffs = [64*nb for nb in range(nnb)]
        def pf():
            srd(k, 72, 64, 65, 3584*2048)
            k("""s_sub_u32 s44, s2, 128
            s_lshl_b32 s44, s44, 3
            s_add_u32 s44, s44, s14
            s_mul_i32 s45, s44, 7168
            s_lshl_b32 s44, s44, 11
            v_lshlrev_b32 v13, 7, v1
            s_mov_b64 exec, s[42:43]
            buffer_load_dword v220, v13, s[72:75], s45 offen""")
            srd(k, 72, 62, 63, 2*MB)
            k("""s_mov_b64 exec, 0xffff
            buffer_load_dword v221, v13, s[72:75], s44 offen
            s_mov_b64 exec, -1""")
        def late():
            for nb in range(nnb): k(f"buffer_load_ushort v{250+nb}, v12, s[32:35], 0 offen offset:{64*nb}")
        loops(tag, woffs, (), nnb == 3, pf if PF3 else None, late)
        k.stamp(2)
        k("v_mov_b32 v60, s51\nv_mov_b32 v61, s51\nv_add_u32 v14, 4096, v2\ns_mov_b32 s53, s52\ns_mov_b32 s54, 1.0\ns_mov_b32 s55, 1.0")
        fixup(nnb, (), True, lambda: k("s_barrier"))
        if nnb == 3: wfill("f")
        for nb in range(nnb):
            for mb in range(2): gelu_tile(nb, mb)
        if 'ph' not in EXP: k.stamp(3)
        k.prof_end(1, 28)
        k("s_branch .g2_entry")

    k(".g1_qkv:")
    srd(k, 20, 4, 5, 1024*6144)
    srd(k, 32, 6, 7, 65536)
    k(f"""s_mov_b32 s38, {32*6144}
    s_mul_i32 s37, s36, {6144//2}
    s_mov_b32 s42, 0xf0ffffff
    s_mov_b32 s43, 0x000fffff
    s_lshl_b32 s44, s18, 7
    v_mul_u32_u24 v3, 6144, v10
    v_lshrrev_b32 v12, 3, v11
    v_lshl_add_u32 v3, v12, 11, v3
    v_and_b32 v12, 7, v11
    v_lshl_add_u32 v3, v12, 4, v3
    v_add_u32 v3, s44, v3
    v_add_u32 v4, {2*6144-896}, v3
    s_lshl_b32 s45, s16, 6
    v_add_u32 v6, s45, v6
    s_lshl_b32 s53, s18, 1
    s_add_u32 s53, s53, s16""")
    k(f"""s_cmp_lt_u32 s15, 2
    s_cbranch_scc0 .g1_nophi
    s_lshl_b32 s44, s53, 11
    s_lshl_b32 s45, s15, 10
    s_add_u32 s44, s44, s45
    s_lshl_b32 s54, s16, 11
    s_add_u32 s45, s45, s54
    s_add_u32 m0, s45, {L_WPHI}
    s_nop 0
    buffer_load_dwordx4 v2, s[32:35], s44 offen lds
    .g1_nophi:""")
    prologue_dmas(96)
    k(f"""v_lshl_add_u32 v12, v7, 2, v8
    v_lshl_add_u32 v13, v12, 6, v9
    s_lshl_b32 s44, s16, 11
    s_add_u32 s44, s44, {L_WPHI}
    v_add_u32 v13, s44, v13""")
    k("s_waitcnt vmcnt(13)\ns_barrier")
    k.stamp(1)
    for ks in range(2):
        for q in range(2):
            k(f"ds_read_b64_tr_b16 v[{160+4*ks+2*q}:{161+4*ks+2*q}], v13 offset:{(16*ks+8*q)*64}")
    woffs = [0, 128, 256]
    k("s_cmp_eq_u32 s16, 0\ns_cbranch_scc0 .g1_q1")
    loops("q", woffs, (2,), False)
    k("s_branch .g1_qdone\n.g1_q1:")
    loops("r", woffs, (2,), True)
    k(".g1_qdone:")
    k.stamp(2)
    def rsrows():
        k(f"""s_lshl_b32 s44, s14, 8
        s_add_u32 s44, s44, {L_RS}
        v_and_b32 v253, 31, v1
        v_lshl_add_u32 v253, v253, 2, s44
        ds_write_b32 v253, v241
        ds_write_b32 v253, v247 offset:128
        v_lshl_add_u32 v253, v7, 4, s44
        s_waitcnt lgkmcnt(0)""")
        for mb in range(2):
            for j in range(4): k(f"ds_read_b128 v[{192+16*mb+4*j}:{195+16*mb+4*j}], v253 offset:{128*mb+32*j}")
    fixup(3, (2,), False, rsrows)
    def pack(dst, src):
        for i in range(8): k(f"v_cvt_pk_bf16_f32 v{dst+i}, v{src+2*i}, v{src+2*i+1}")
    k(f"""s_mul_i32 s44, s14, 8704
    v_and_b32 v14, 31, v1
    v_mul_u32_u24 v14, 136, v14
    v_lshl_add_u32 v14, v7, 3, v14
    v_add_u32 v14, s44, v14
    v_mul_u32_u24 v15, 136, v12
    v_add3_u32 v15, v15, v9, s44
    s_mov_b32 s55, {f2u(LOG2E)}""")
    k("s_waitcnt lgkmcnt(0)")
    for t in (2, 3, 0, 1):
        for i in range(0, 16, 2): k(f"v_pk_mul_f32 {pk(64+16*t+i)}, {pk(64+16*t+i)}, {pk(56+2*(t&1))}")
    for i in range(0, 32, 2): k(f"v_pk_mul_f32 {pk(128+i)}, {pk(128+i)}, {pk(192+i)}")
    for mb in range(2): pack(16 + 8*mb, 96 + 16*mb)
    for mb in range(2): pack(48 + 8*mb, 64 + 16*mb)
    for mb in range(2):
        for ks in range(2):
            k(f"{MF} {vr(64+16*mb,16)}, {vr(160+4*ks,4)}, {vr(16+8*mb+4*ks,4)}, {'0' if ks == 0 else vr(64+16*mb,16)}")
    for mb in range(2):
        for ks in range(2):
            k(f"{MF} {vr(96+16*mb,16)}, {vr(160+4*ks,4)}, {vr(48+8*mb+4*ks,4)}, {'0' if ks == 0 else vr(96+16*mb,16)}")
    for mb in range(2): pack(32 + 8*mb, 128 + 16*mb)
    k("s_barrier")
    def softmax(P, D):
        E, N = 128, 144
        for i in range(8): k(f"v_cvt_pk_bf16_f32 v{E+i}, v{P+2*i}, v{P+2*i+1}")
        for i in range(8): k(f"v_lshlrev_b32 v{P+2*i}, 16, v{E+i}\nv_and_b32 v{P+2*i+1}, s47, v{E+i}")
        k(f"v_max3_f32 v168, v{P}, v{P+1}, v{P+2}\nv_min3_f32 v169, v{P}, v{P+1}, v{P+2}")
        k(f"v_max3_f32 v170, v{P+3}, v{P+4}, v{P+5}\nv_min3_f32 v171, v{P+3}, v{P+4}, v{P+5}")
        for i in range(6, 14, 4):
            k(f"v_max3_f32 v168, v168, v{P+i}, v{P+i+1}\nv_min3_f32 v169, v169, v{P+i}, v{P+i+1}")
            k(f"v_max3_f32 v170, v170, v{P+i+2}, v{P+i+3}\nv_min3_f32 v171, v171, v{P+i+2}, v{P+i+3}")
        k(f"v_max3_f32 v168, v168, v{P+14}, v{P+15}\nv_min3_f32 v169, v169, v{P+14}, v{P+15}")
        k("v_max_f32 v168, v168, v170\nv_min_f32 v169, v169, v171")
        k("v_mov_b32 v170, v168\nv_mov_b32 v171, v169\ns_nop 0\nv_permlane32_swap_b32 v168, v170\nv_permlane32_swap_b32 v169, v171")
        k("v_max_f32 v168, v168, v170\nv_min_f32 v169, v169, v171")
        k("v_mul_f32 v168, s55, v168\nv_mul_f32 v169, s55, v169")
        for i in range(0, 16, 2):
            k(f"v_pk_fma_f32 {pk(E+i)}, {pk(P+i)}, s[54:55], v[168:169] op_sel:[0,1,0] op_sel_hi:[1,1,0] neg_lo:[0,0,1] neg_hi:[0,0,1]")
            k(f"v_pk_fma_f32 {pk(N+i)}, {pk(P+i)}, s[54:55], v[168:169] op_sel:[0,1,1] op_sel_hi:[1,1,1] neg_lo:[1,0,0] neg_hi:[1,0,0]")
        for i in range(16): k(f"v_exp_f32 v{E+i}, v{E+i}\nv_exp_f32 v{N+i}, v{N+i}")
        k(f"v_pk_add_f32 v[168:169], {pk(E)}, {pk(E+2)}\nv_pk_add_f32 v[170:171], {pk(N)}, {pk(N+2)}")
        k(f"v_pk_add_f32 v[172:173], {pk(E+4)}, {pk(E+6)}\nv_pk_add_f32 v[174:175], {pk(N+4)}, {pk(N+6)}")
        for i in range(8, 16, 4):
            k(f"v_pk_add_f32 v[168:169], v[168:169], {pk(E+i)}\nv_pk_add_f32 v[170:171], v[170:171], {pk(N+i)}")
            k(f"v_pk_add_f32 v[172:173], v[172:173], {pk(E+i+2)}\nv_pk_add_f32 v[174:175], v[174:175], {pk(N+i+2)}")
        k("v_pk_add_f32 v[168:169], v[168:169], v[172:173]\nv_pk_add_f32 v[170:171], v[170:171], v[174:175]")
        k("v_add_f32 v168, v168, v169\nv_add_f32 v169, v170, v171")
        k("v_mov_b32 v170, v168\nv_mov_b32 v171, v169\ns_nop 0\nv_permlane32_swap_b32 v168, v170\nv_permlane32_swap_b32 v169, v171")
        k("v_add_f32 v168, v168, v170\nv_add_f32 v169, v169, v171\nv_rcp_f32 v168, v168\nv_rcp_f32 v169, v169\ns_nop 0")
        for i in range(0, 16, 2):
            k(f"v_pk_mul_f32 {pk(E+i)}, {pk(E+i)}, v[168:169] op_sel:[0,0] op_sel_hi:[1,0]\nv_pk_mul_f32 {pk(N+i)}, {pk(N+i)}, v[168:169] op_sel:[0,1] op_sel_hi:[1,1]")
        for i in range(8): k(f"v_cvt_pk_bf16_f32 v{D+i}, v{E+2*i}, v{E+2*i+1}")
        for i in range(8): k(f"v_cvt_pk_bf16_f32 v{D+8+i}, v{N+2*i}, v{N+2*i+1}")
    for mb in range(2):
        D = 208 + 0
        D = 176 + 16*mb
        softmax(64 + 16*mb, D)
        for s in range(2):
            for j in range(4):
                k(f"ds_write_b64 v14, v[{D+8*s+2*j}:{D+8*s+2*j+1}] offset:{32*mb*136 + (32*s+8*j)*2}")
    k("s_waitcnt lgkmcnt(0)")
    n = 0
    for fb in range(2):
        for mb in range(2):
            for ks in range(2):
                f = 128 + ((fb*2+mb)*2+ks)*4
                for q in range(2):
                    k(f"ds_read_b64_tr_b16 v[{f+2*q}:{f+2*q+1}], v15 offset:{(32*mb+16*ks+8*q)*136 + fb*64}")
        if fb == 0: k("v_mov_b32 v168, 0\nv_mov_b32 v169, 0")
    for fb in range(2):
        k(f"s_waitcnt lgkmcnt({8 if fb == 0 else 0})")
        i = 0
        for mb in range(2):
            for ks in range(2):
                f = 128 + ((fb*2+mb)*2+ks)*4
                k(f"{MF} {vr(224+16*fb,16)}, {vr(f,4)}, {vr(32+8*mb+4*ks,4)}, {'0' if i == 0 else vr(224+16*fb,16)}")
                for t in range(4): k(f"v_dot2c_f32_bf16 v{168+fb}, s56, v{f+t}")
                i += 1
    k("v_permlane32_swap_b32 v168, v169\nv_add_f32 v168, v168, v169")
    k(f"""s_lshl_b32 s44, s14, 13
    v_add_u32 v14, s44, v2
    v_add_u32 v14, {L_R}, v14
    s_lshl_b32 s44, s14, 8
    v_lshlrev_b32 v13, 2, v1
    v_add_u32 v15, s44, v13
    v_add_u32 v15, {L_ZL}, v15
    ds_write_b32 v15, v168""")
    for qd in range(8): k(f"ds_write_b128 v14, v[{224+4*qd}:{227+4*qd}] offset:{qd*1024}")
    k(f"""s_lshl_b32 s44, s16, 15
    s_lshl_b32 s45, s15, 11
    s_add_u32 s44, s44, s45
    v_add_u32 v14, s44, v2
    v_add_u32 v14, {L_R}, v14
    s_lshl_b32 s44, s16, 10
    v_add_u32 v15, s44, v13
    v_add_u32 v15, {L_ZL}, v15
    s_lshl_b32 s57, s53, 16
    s_add_u32 s57, s57, s45
    s_add_u32 s57, s57, {KVP}
    s_lshl_b32 s44, s17, 13
    s_add_u32 s58, s57, s44
    s_lshl_b32 s59, s53, 11
    s_add_u32 s59, s59, {ZP}
    s_lshl_b32 s44, s17, 8
    s_add_u32 s60, s59, s44""")
    k("s_waitcnt lgkmcnt(0)\ns_barrier")
    for ww in range(4):
        for qq in range(2): k(f"ds_read_b128 v[{128+8*ww+4*qq}:{131+8*ww+4*qq}], v14 offset:{ww*8192+qq*1024}")
    for ww in range(4): k(f"ds_read_b32 v{168+ww}, v15 offset:{ww*256}")
    k("s_waitcnt lgkmcnt(4)")
    for i in range(0, 8, 2): k(f"v_pk_add_f32 {pk(128+i)}, {pk(128+i)}, {pk(136+i)}\nv_pk_add_f32 {pk(144+i)}, {pk(144+i)}, {pk(152+i)}")
    for i in range(0, 8, 2): k(f"v_pk_add_f32 {pk(208+i)}, {pk(128+i)}, {pk(144+i)}")
    k("buffer_store_dwordx4 v[208:211], v2, s[28:31], s58 offen sc1\nbuffer_store_dwordx4 v[212:215], v2, s[28:31], s58 offen offset:1024 sc1")
    k("""s_waitcnt lgkmcnt(0)
    v_add_f32 v168, v168, v169
    v_add_f32 v170, v170, v171
    v_add_f32 v216, v168, v170
    s_cmp_eq_u32 s15, 0
    s_cbranch_scc0 .g1_noz
    buffer_store_dword v216, v13, s[28:31], s60 offen sc1
    .g1_noz:""")
    if 'ph' not in EXP: k.stamp(3)
    softmax(96, 176)
    k("s_waitcnt vmcnt(0)\ns_barrier")
    if 'ph' not in EXP: k.stamp(4)
    k(f"""s_lshl_b32 s61, s18, 7
    s_add_u32 s61, s61, {FLAGS + FL_K2}
    s_cmp_eq_u32 s14, 0
    s_cbranch_scc0 .g1_nofl
    s_lshl_b32 s44, s17, 3
    v_mov_b32 v14, s44
    v_mov_b32 v220, s76
    v_mov_b32 v221, s77
    s_mov_b64 exec, 1
    buffer_store_dwordx2 v[220:221], v14, s[28:31], s61 offen sc1
    s_mov_b64 exec, -1
    .g1_nofl:
    s_cmp_eq_u32 s16, 0
    s_cbranch_scc1 .g1_nowf""")
    wfill("q")
    k(".g1_nowf:")
    softmax(112, 192)
    if 'ph' not in EXP: k.stamp(5)
    k(f"""s_cmp_eq_u32 s14, 0
    s_cbranch_scc0 .g1_polled
    s_mov_b32 s44, {POLL}
    v_lshlrev_b32 v14, 3, v1
    s_mov_b64 exec, 0xff
    .g1_poll:
    buffer_load_dwordx2 v[220:221], v14, s[28:31], s61 offen sc1
    s_waitcnt vmcnt(0)
    v_cmp_ne_u64 vcc, s[76:77], v[220:221]
    s_sub_u32 s44, s44, 1
    s_cbranch_vccz .g1_pdone
    s_sleep 1
    s_cmp_lg_u32 s44, 0
    s_cbranch_scc1 .g1_poll
    .g1_pdone:
    s_mov_b64 exec, -1
    .g1_polled:
    s_barrier""")
    if 'ph' not in EXP: k.stamp(6)
    for mm in range(8):
        k(f"buffer_load_dwordx4 v[{64+8*mm}:{67+8*mm}], v2, s[28:31], s57 offen sc1\nbuffer_load_dwordx4 v[{68+8*mm}:{71+8*mm}], v2, s[28:31], s57 offen offset:1024 sc1")
        if mm < 7: k("s_add_u32 s57, s57, 8192")
    k("s_cmp_eq_u32 s15, 0\ns_cbranch_scc0 .g1_noz2")
    for mm in range(8): k(f"buffer_load_dword v{128+mm}, v13, s[28:31], s59 offen offset:{256*mm} sc1")
    k(f"""s_lshl_b32 s44, s16, 7
    v_lshlrev_b32 v14, 1, v1
    v_add_u32 v14, s44, v14
    v_add_u32 v14, {L_ZB}, v14
    s_waitcnt vmcnt(0)
    v_add_f32 v128, v128, v129
    v_add_f32 v130, v130, v131
    v_add_f32 v132, v132, v133
    v_add_f32 v134, v134, v135
    v_add_f32 v128, v128, v130
    v_add_f32 v132, v132, v134
    v_add_f32 v128, v128, v132
    v_cvt_pk_bf16_f32 v128, v128, v128
    ds_write_b16 v14, v128
    .g1_noz2:""")
    k(f"""s_lshl_b32 s44, s16, 12
    v_add_u32 v14, s44, v2
    v_add_u32 v14, {L_KF}, v14
    s_lshl_b32 s45, s15, 10
    v_add_u32 v15, s45, v14
    s_lshl_b32 s44, s16, 7
    v_lshlrev_b32 v12, 3, v7
    v_add_u32 v12, s44, v12
    v_add_u32 v12, {L_ZB}, v12
    s_waitcnt vmcnt(0)""")
    for st in (32, 16, 8):
        for i in range(0, st, 2): k(f"v_pk_add_f32 {pk(64+i)}, {pk(64+i)}, {pk(64+st+i)}")
    for i in range(4): k(f"v_cvt_pk_bf16_f32 v{64+i}, v{64+2*i}, v{65+2*i}")
    k("ds_write_b128 v15, v[64:67]\ns_waitcnt lgkmcnt(0)\ns_barrier")
    for f in range(4): k(f"ds_read_b128 v[{64+4*f}:{67+4*f}], v14 offset:{1024*f}")
    for f in range(4):
        for q in range(2): k(f"ds_read_b64 v[{80+4*f+2*q}:{81+4*f+2*q}], v12 offset:{(16*f+8*q)*2}")
    k(f"""s_lshl_b32 s44, s53, 11
    s_add_u32 s48, s48, s44
    s_add_u32 s50, s48, {A3S}
    s_waitcnt lgkmcnt(0)""")
    for mb in range(2):
        for f in range(4):
            k(f"{MF} {vr(128+16*mb,16)}, {vr(80+4*f,4)}, {vr(176+16*mb+4*f,4)}, {'0' if f == 0 else vr(128+16*mb,16)}")
            k(f"{MF} {vr(96+16*mb,16)}, {vr(64+4*f,4)}, {vr(176+16*mb+4*f,4)}, {'0' if f == 0 else vr(96+16*mb,16)}")
    for mb in range(2):
        d = 128 + 16*mb; o = 96 + 16*mb; P = 16 + 8*mb
        rnd_bf16(k, d); k(f"v_add_f32 v{d}, {f2u(1e-6)}, v{d}"); rnd_bf16(k, d); k(f"v_rcp_f32 v{d}, v{d}")
        pack(P, o)
        for i in range(8): k(f"v_lshlrev_b32 v{o+2*i}, 16, v{P+i}\nv_and_b32 v{o+2*i+1}, s47, v{P+i}")
        for i in range(0, 16, 2): k(f"v_pk_mul_f32 {pk(o+i)}, {pk(o+i)}, {pk(d)} op_sel:[0,0] op_sel_hi:[1,0]")
        pack(P, o)
        if mb == 0: k("""s_cmp_eq_u32 s16, 0
            s_cbranch_scc1 .g1_noep
            s_mov_b64 exec, s[40:41]
            buffer_load_dwordx2 v[10:11], v5, s[28:31], s38 offen sc1
            s_mov_b64 exec, -1
            .g1_noep:""")
        for ks in range(2):
            k(f"buffer_store_dwordx4 v[{P+4*ks}:{P+4*ks+3}], v2, s[28:31], s{48+2*mb} offen offset:{1024*ks} sc1")
    k.prof_end(1, 28)
    from gen3 import k3
    k3(k)
    k(".g1_end:")
    return k

def build(path, which=None, verbose=False):
    which = which or (k2,)
    ks = []
    for f in which:
        k = f()
        k.lines, n = haz.fix(k.name, k.lines, verbose)
        assert haz.check(k.name, k.lines + ["s_endpgm"]) == 0
        print(k.name, "lines", len(k.lines), "nop states", n)
        ks.append(k)
    open(path, "w").write(module(ks))
if __name__ == "__main__":
    if "-p" in sys.argv:
        Kern.prof = True
        build("prof%s.s" % EXP); sys.exit(0)
    build("recurrent_scan__linear_kernel_hedgehog__dense_activation_gelu__prompt.s", verbose="-v" in sys.argv)
```
